```python
import torch

def _softmax(x, axis=-1):
    return torch.softmax(x, dim=axis)

def _gelu(x):
    return torch.nn.functional.gelu(x, approximate='tanh')

def _silu(x):
    return torch.nn.functional.silu(x)

def _sigmoid(x):
    return torch.sigmoid(x)

def _layernorm(x, axis=-1, eps=1e-05):
    m = x.mean(dim=axis, keepdim=True)
    v = x.var(dim=axis, keepdim=True, unbiased=False)
    return (x - m) / torch.sqrt(v + eps)

def _scatter_add(tgt, idx, src, axis=0):
    return tgt.clone().index_add_(axis, idx, src)

def _segment_sum(src, seg, n):
    out = torch.zeros((n,) + src.shape[1:], dtype=src.dtype)
    return out.index_add_(0, seg, src)

def _pad(x, pw):
    flat = tuple((v for pair in reversed(pw) for v in pair))
    return torch.nn.functional.pad(x, flat)
kernel_name = 'adaLN_cond__softmax_full_mha__glu_gated_geglu__prompt'

def setup_inputs():

    _w = lambda a: (lambda t: t.to(torch.bfloat16) if t.is_floating_point() else t)(torch.as_tensor(a))

    def _A_setup():
        B, S, D = (1, 2048, 512)
        return {'x': _w((lambda *s: torch.randn(*s, dtype=torch.bfloat16) * 0.05)(B, S, D)), 'wqkv': _w((lambda *s: torch.randn(*s, dtype=torch.bfloat16) * 0.05)(D, 3 * D)), 'wo': _w((lambda *s: torch.randn(*s, dtype=torch.bfloat16) * 0.05)(D, D))}
    _A_in = _A_setup()

    def _B_setup():
        B, S, Dm, Df = (1, 2048, 512, 1792)
        return {'x': _w((lambda *s: torch.randn(*s, dtype=torch.bfloat16) * 0.05)(B, S, Dm)), 'w_gate': _w((lambda *s: torch.randn(*s, dtype=torch.bfloat16) * 0.8)(Dm, Df) * Dm ** (-0.5)), 'w_up': _w((lambda *s: torch.randn(*s, dtype=torch.bfloat16) * 0.8)(Dm, Df) * Dm ** (-0.5)), 'w_down': _w((lambda *s: torch.randn(*s, dtype=torch.bfloat16) * 0.8)(Df, Dm) * Df ** (-0.5))}
    _B_in = _B_setup()
    return {'A_x': _A_in['x'], 'A_wqkv': _A_in['wqkv'], 'A_wo': _A_in['wo'], 'B_x': _B_in['x'], 'B_w_gate': _B_in['w_gate'], 'B_w_up': _B_in['w_up'], 'B_w_down': _B_in['w_down'], 'c': _w((lambda *s: torch.randn(*s, dtype=torch.bfloat16) * 0.1)(1, 512) * 8.0), 'w_mod': _w((lambda *s: torch.randn(*s, dtype=torch.bfloat16) * 0.1)(512, 6 * 512) * 512 ** (-0.5) * 8.0)}

def reference(A_x, A_wqkv, A_wo, B_x, B_w_gate, B_w_up, B_w_down, c, w_mod):

    def _A_ref(x, wqkv, wo):
        B, S, D = x.shape
        H = 32
        Dh = D // H
        qkv = (lambda x, *d: x.permute(*d))((x @ wqkv).reshape(B, S, 3, H, Dh), 2, 0, 3, 1, 4)
        q, k, v = (qkv[0], qkv[1], qkv[2])
        scale = Dh ** (-0.5)
        scores = torch.einsum('bhqd,bhkd->bhqk', q, k) * scale
        p = _softmax(scores, axis=-1)
        o = torch.einsum('bhqk,bhkd->bhqd', p, v)
        return (lambda x, *d: x.permute(*d))(o, 0, 2, 1, 3).reshape(B, S, D) @ wo

    def _B_ref(x, w_gate, w_up, w_down):
        g = torch.einsum('bsd,df->bsf', x, w_gate)
        u = torch.einsum('bsd,df->bsf', x, w_up)
        h = _gelu(g) * u
        return torch.einsum('bsf,fd->bsd', h, w_down)
    x = A_x
    mod = (_silu(c) @ w_mod).reshape(c.shape[0], 6, 1, -1)
    sa, ca, ga, sb, cb, gb = (mod[:, 0].clone(), mod[:, 1].clone(), mod[:, 2].clone(), mod[:, 3].clone(), mod[:, 4].clone(), mod[:, 5].clone())
    h = _layernorm(x, axis=-1) * (1 + ca) + sa
    x = x + ga * _A_ref(h, A_wqkv, A_wo)
    h = _layernorm(x, axis=-1) * (1 + cb) + sb
    x = x + gb * _B_ref(h, B_w_gate, B_w_up, B_w_down)
    return x
```

```python
import re


def v(a, n=1):
    return f"v{a}" if n == 1 else f"v[{a}:{a+n-1}]"


def a(a_, n=1):
    return f"a{a_}" if n == 1 else f"a[{a_}:{a_+n-1}]"


def s(a_, n=1):
    return f"s{a_}" if n == 1 else f"s[{a_}:{a_+n-1}]"


class Asm:
    def __init__(self):
        self.L = []
        self.vm = []
        self.lg = []
        self.nlab = 0

    def I(self, text):
        for t in text.split("\n"):
            t = t.strip()
            if t:
                self.L.append("    " + t)

    def C(self, text):
        self.L.append("    ; " + text)

    def label(self, name):
        self.L.append(name + ":")

    def newlab(self, p="L"):
        self.nlab += 1
        return f"{p}_{self.nlab}"

    def vmem(self, text, tag=None):
        self.I(text)
        self.vm.append(tag)

    def lds(self, text, tag=None):
        self.I(text)
        self.lg.append(tag)

    @staticmethod
    def _cnt(q, tag):
        if tag == "all":
            n = 0 if q else None
            q.clear()
            return n
        idx = None
        for i, t in enumerate(q):
            if t == tag:
                idx = i
        if idx is None:
            return None
        n = len(q) - 1 - idx
        del q[: idx + 1]
        return n

    def wait(self, vm=None, lg=None, force=False):
        parts = []
        if vm is not None:
            n = self._cnt(self.vm, vm)
            if n is None and force:
                n = 0 if vm == "all" else None
            if n is not None:
                if n > 63:
                    n = 63
                    del self.vm[: len(self.vm) - 63]
                parts.append(f"vmcnt({n})")
        if lg is not None:
            n = self._cnt(self.lg, lg)
            if n is None and force:
                n = 0 if lg == "all" else None
            if n is not None:
                if n > 15:
                    n = 15
                    del self.lg[: len(self.lg) - 15]
                parts.append(f"lgkmcnt({n})")
        if parts:
            self.I("s_waitcnt " + " ".join(parts))
            return True
        return False

    def nop(self, n):
        while n > 0:
            k = min(n, 16)
            self.I(f"s_nop {k-1}")
            n -= k

    def text(self):
        return "\n".join(self.L)


_REG = re.compile(r"\b([vas])(\d+)\b|\b([vas])\[(\d+):(\d+)\]")
TRANS = ("v_exp_", "v_log_", "v_rcp_", "v_rsq_", "v_sqrt_", "v_sin_", "v_cos_")


def regs(op):
    out = set()
    for m in _REG.finditer(op):
        if m.group(1):
            out.add((m.group(1), int(m.group(2))))
        else:
            for i in range(int(m.group(4)), int(m.group(5)) + 1):
                out.add((m.group(3), i))
    if re.search(r"\bvcc\b", op):
        out.add(("s", "vcc"))
    if re.search(r"\bm0\b", op):
        out.add(("s", "m0"))
    if re.search(r"\bexec(_lo|_hi)?\b", op):
        out.add(("s", "exec"))
    return out


def split_ops(rest):
    ops, cur, depth = [], "", 0
    for ch in rest:
        if ch == "[":
            depth += 1
        if ch == "]":
            depth -= 1
        if ch == "," and depth == 0:
            ops.append(cur.strip())
            cur = ""
        else:
            cur += ch
    if cur.strip():
        ops.append(cur.strip())
    return ops


def passes(mn):
    if "32x32x16" in mn or "32x32x32" in mn or "32x32x8" in mn:
        return 8
    if "16x16x32" in mn or "16x16x64" in mn or "16x16x16" in mn:
        return 4
    raise ValueError(mn)


def parse(line):
    t = line.split(";")[0].strip()
    if not t or t.endswith(":") or t.startswith("."):
        return None
    parts = t.split(None, 1)
    mn = parts[0]
    ops = split_ops(parts[1]) if len(parts) > 1 else []
    d = dict(mn=mn, ops=ops, text=t, defs=set(), uses=set(), kind="other", ws=1)
    if mn == "s_nop":
        d["ws"] = int(ops[0]) + 1
        return d
    if mn.startswith("v_mfma") or mn.startswith("v_smfmac"):
        d["kind"] = "mfma"
        d["defs"] = regs(ops[0])
        d["ab"] = regs(ops[1]) | regs(ops[2])
        if mn.startswith("v_smfmac"):
            d["c"] = regs(ops[0])
            d["ab"] |= regs(ops[3].split()[0])
        else:
            d["c"] = regs(ops[3].split()[0])
        d["uses"] = d["ab"] | d["c"]
        d["passes"] = passes(mn)
        return d
    if mn.startswith("v_"):
        d["kind"] = "valu"
        d["trans"] = mn.startswith(TRANS)
        d["dpp"] = "_dpp" in mn or "row_" in t or "quad_perm" in t
        if mn.startswith("v_permlane"):
            d["defs"] = regs(ops[0]) | regs(ops[1])
            d["uses"] = set(d["defs"])
            d["perml"] = True
            return d
        nd = 1
        if mn.startswith(("v_add_co", "v_sub_co", "v_addc_co", "v_subb_co", "v_div_scale", "v_mad_u64")):
            nd = 2
        for o in ops[:nd]:
            d["defs"] |= regs(o)
        for o in ops[nd:]:
            d["uses"] |= regs(o)
        if mn.startswith(("v_fmac", "v_dot2c", "v_pk_fmac", "v_writelane")) or d["dpp"]:
            d["uses"] |= regs(ops[0])
        if mn.startswith("v_cndmask") and len(ops) == 3:
            d["uses"].add(("s", "vcc"))
        if mn.startswith("v_cmpx"):
            d["defs"].add(("s", "exec"))
        return d
    if mn.startswith(("buffer_", "global_")):
        d["kind"] = "vmem"
        lds = " lds" in (" " + t) or "_lds_" in mn
        allr = set()
        for o in ops:
            allr |= regs(o)
        if "load" in mn and not lds:
            d["defs"] = regs(ops[0])
            for o in ops[1:]:
                d["uses"] |= regs(o)
        else:
            d["uses"] = allr
            if lds:
                d["uses"].add(("s", "m0"))
                d["dma"] = True
            if "store" in mn and ("x3" in mn or "x4" in mn):
                d["wide"] = regs(ops[0]) if mn.startswith("buffer_") else regs(ops[1])
        return d
    if mn.startswith("ds_"):
        d["kind"] = "ds"
        if mn.startswith(("ds_read", "ds_bpermute", "ds_permute", "ds_swizzle")):
            d["defs"] = regs(ops[0])
            for o in ops[1:]:
                d["uses"] |= regs(o)
        else:
            for o in ops:
                d["uses"] |= regs(o)
        return d
    if mn.startswith("s_"):
        d["kind"] = "salu"
        if mn.startswith(("s_cmp", "s_cbranch", "s_branch", "s_waitcnt", "s_barrier", "s_endpgm", "s_sleep", "s_setprio", "s_bitcmp")):
            for o in ops:
                d["uses"] |= regs(o)
            return d
        if ops:
            d["defs"] = regs(ops[0])
        for o in ops[1:]:
            d["uses"] |= regs(o)
        if "saveexec" in mn:
            d["defs"].add(("s", "exec"))
        return d
    return d


def check_hazards(text):
    ins = []
    for n, line in enumerate(text.split("\n"), 1):
        p = parse(line)
        if p:
            p["line"] = n
            ins.append(p)
    probs = []
    for i, c in enumerate(ins):
        dist = 0
        j = i - 1
        while j >= 0 and dist < 20:
            p = ins[j]
            need = 0
            why = ""
            if p["kind"] == "valu":
                vdefs = {r for r in p["defs"] if r[0] in "va"}
                sdefs = {r for r in p["defs"] if r[0] == "s"}
                if c["kind"] == "mfma" and vdefs & c["uses"]:
                    need, why = 2, "valu->mfma"
                if c["kind"] == "valu":
                    if c.get("perml") and vdefs & c["uses"]:
                        need, why = max(need, 2), "valu->permlane"
                    if c["dpp"] and vdefs & c["uses"]:
                        need, why = max(need, 2), "valu->dpp"
                    if c["dpp"] and ("s", "exec") in sdefs:
                        need, why = max(need, 5), "exec->dpp"
                    if p["trans"] and not c["trans"] and vdefs & c["uses"]:
                        need, why = max(need, 1), "trans->valu"
                    if c["mn"].startswith(("v_readlane", "v_readfirstlane")) and vdefs & c["uses"]:
                        need, why = max(need, 1), "valu->readlane"
                    if sdefs & c["uses"]:
                        need, why = max(need, 4 if c["mn"].startswith(("v_readlane", "v_writelane")) else 2), "valu sgpr->valu"
                    if ("op_sel" in p["text"] and not p["mn"].startswith("v_pk_") or "_sdwa" in p["mn"]) and vdefs & (c["uses"] | c["defs"]):
                        need, why = max(need, 1), "opsel->valu"
                if c["kind"] == "vmem" and sdefs & c["uses"]:
                    need, why = max(need, 5), "valu sgpr->vmem"
                if c["kind"] == "mfma" and ("s", "exec") in sdefs:
                    need, why = max(need, 4), "valu exec->mfma"
            if p["kind"] == "salu" and ("s", "m0") in p["defs"] and c.get("dma"):
                need, why = 1, "m0->dma"
            if p["kind"] == "vmem" and p.get("wide") and p["wide"] & c["defs"]:
                need, why = (2 if c["kind"] == "valu" else 1), "store data WAR"
            if p["kind"] == "mfma":
                ps = p["passes"]
                D = p["defs"]
                t = {4: 0, 8: 1}[ps]
                if c["kind"] == "mfma":
                    if D & c["ab"]:
                        need, why = (8, 12)[t], "mfma D->mfma AB"
                    elif D & c["c"] and not (D == c["c"] and ps == c["passes"]):
                        need, why = (6, 10)[t], "mfma D->mfma C overlap"
                elif c["kind"] in ("valu", "vmem", "ds") and D & (c["uses"] | c["defs"]):
                    need, why = (8, 12)[t], "mfma D->valu/mem"
                if c["kind"] == "valu" and p["c"] & c["defs"]:
                    need, why = max(need, (3, 7)[t]), why or "mfma C WAR"
            if need > dist:
                probs.append(f"line {c['line']}: {c['text']}  needs {need} after line {p['line']}: {p['text']} ({why}); has {dist}")
            dist += p["ws"]
            j -= 1
    return probs
```

```python
import sys, math, argparse
from asmlib import Asm, v, a, s, check_hazards

NAME = "adaLN_cond__softmax_full_mha__glu_gated_geglu__prompt"

WS_E = 0x0
WS_XT = 0x1000
WS_FA = 0x2000
WS_FM = 0x3000
WS_FH1 = 0x4000
WS_FB = 0x6000
WS_FC = 0x8000
WS_FS = 0xA000
WS_FH2 = 0xC000
WS_FE = 0xE000
WS_MA = 0x20000
WS_MP = 0x30000
WS_ST = 0x40000
WS_H1 = 0x100000
WS_Q = 0x300000
WS_KV = 0x500000
WS_O = 0x900000
WS_H2 = 0xB00000
WS_HH = 0xD00000
WS_DBG = 0x1400000
WS_SIZE = 0x1500000

WS = 4; X = 8; WQKV = 12; WO = 16; WGU = 20; WD = 28; CC = 32; WMOD = 36; OUT = 40
sG = 44; sM = 45; sW = 46; sTAG = 47; sFAST = 48; sXCC = 49; sCNT = 50; sT0 = 51
KA = 52
sT1 = 52; sT2 = 53; sT3 = 54; sT4 = 55; sT5 = 56; sT6 = 57; sT7 = 58
sMSK = 60
sP0 = 62; sP1 = 63; sP2 = 64; sP3 = 65; sP4 = 66; sP5 = 67
sCMP = 68
sSTAMP = 76

vL = 1; vL16 = 2; vIDX = 3; vTR = 4; vTAG = 5; vT0 = 6; vT1 = 7; vT2 = 8; vT3 = 9
vP0 = 10; vP1 = 11; vP2 = 12; vP3 = 13; vP4 = 14; vP5 = 15

LDS_W = 0
LDS_RED = 98304
LDS_MOD = 162816
PAIR = 29184
SLOT = 14592
LDS_WO = 87552
LDS_OR = 87552
LDS_BYTES = 163840

LOG2E = 1.4426950408889634


def f32(x):
    import struct
    return hex(struct.unpack("<I", struct.pack("<f", x))[0])


class Gen(Asm):
    def __init__(self, opt):
        super().__init__()
        self.opt = opt
        self.nstamp = 0

    def stamp(self, name):
        if not self.opt.stamps:
            return
        self.C(f"stamp {self.nstamp}: {name}")
        self.I(f"s_memrealtime {s(sSTAMP,2)}")
        self.I("s_waitcnt lgkmcnt(0)")
        self.lg.clear()
        self.I(f"s_mov_b32 {s(sSTAMP+2+self.nstamp)}, {s(sSTAMP)}")
        self.nstamp += 1
        assert sSTAMP + 2 + self.nstamp <= 102

    def srd(self, d, karg, nbytes):
        self.I(f"s_mov_b32 {s(d)}, {s(KA+2*karg)}")
        self.I(f"s_mov_b32 {s(d+1)}, {s(KA+2*karg+1)}")
        self.I(f"s_mov_b32 {s(d+2)}, {hex(nbytes)}")
        self.I(f"s_mov_b32 {s(d+3)}, 0x00020000")

    def poll(self, soff, voff, tmp=vT0):
        lp, done = self.newlab("L_poll"), self.newlab("L_got")
        self.I(f"s_mov_b32 {s(sCNT)}, 0x100000")
        self.label(lp)
        self.I(f"buffer_load_dword {v(tmp)}, {v(voff)}, {s(WS,4)}, {s(soff)} offen sc1")
        self.I("s_waitcnt vmcnt(0)")
        self.vm.clear()
        self.I(f"v_cmp_ne_u32 vcc, {s(sTAG)}, {v(tmp)}")
        self.I(f"s_cbranch_vccz {done}")
        self.I(f"s_sub_u32 {s(sCNT)}, {s(sCNT)}, 1")
        self.I(f"s_cbranch_scc0 {lp}")
        self.label(done)

    def publish(self, stores, sflag, local):
        def body(fl):
            stores(fl)
            self.I("s_waitcnt vmcnt(0)")
            self.vm.clear()
            self.vmem(f"buffer_store_dword {v(vTAG)}, off, {s(WS,4)}, {s(sflag)} {fl}", "flag")
        if not local:
            body("sc1")
            return
        slow, done = self.newlab("L_slow"), self.newlab("L_pub")
        self.I(f"s_cmp_eq_u32 {s(sFAST)}, 0")
        self.I(f"s_cbranch_scc1 {slow}")
        body("")
        self.I(f"s_branch {done}")
        self.label(slow)
        body("sc1")
        self.label(done)

    def unpack(self, dlo, dhi, src):
        self.I(f"v_lshlrev_b32 {v(dlo)}, 16, {v(src)}")
        self.I(f"v_and_b32 {v(dhi)}, 0xffff0000, {v(src)}")

    def round_bf16(self, r):
        self.I(f"v_cvt_pk_bf16_f32 {v(r)}, {v(r)}, {v(r)}")
        self.I(f"v_and_b32 {v(r)}, 0xffff0000, {v(r)}")

    def dpp_add(self, r, ctl):
        self.I(f"v_add_f32_dpp {v(r)}, {v(r)}, {v(r)} {ctl} row_mask:0xf bank_mask:0xf")

    def dma(self, voff, srd_, m0_expr, so_expr, tag, flags=""):
        self.I(f"s_add_u32 m0, {s(m0_expr[0])}, {m0_expr[1]}")
        self.I(f"s_add_u32 {s(sT0)}, {s(so_expr[0])}, {so_expr[1]}")
        self.vmem(f"buffer_load_dwordx4 {v(voff)}, {s(srd_,4)}, {s(sT0)} offen {flags} lds", tag)

    def prologue(self):
        I = self.I
        I("s_cmp_ge_u32 s2, 256")
        I("s_cbranch_scc1 L_end")
        I(f"s_load_dwordx16 {s(KA,16)}, s[0:1], 0")
        I(f"s_load_dwordx8 {s(KA+16,8)}, s[0:1], 64")
        if self.opt.stamps:
            I(f"s_memrealtime {s(sSTAMP,2)}")
        I(f"v_and_b32 {v(vL)}, 63, v0")
        I(f"v_lshrrev_b32 {v(vT0)}, 6, v0")
        I(f"v_lshlrev_b32 {v(vL16)}, 4, {v(vL)}")
        I(f"v_readfirstlane_b32 {s(sW)}, {v(vT0)}")
        I(f"s_and_b32 {s(sG)}, s2, 7")
        I(f"s_lshr_b32 {s(sM)}, s2, 3")
        I(f"s_getreg_b32 {s(sXCC)}, hwreg(HW_REG_XCC_ID)")
        I(f"s_and_b32 {s(sXCC)}, {s(sXCC)}, 15")
        I(f"v_lshrrev_b32 {v(vT0)}, 2, {v(vL)}")
        I(f"v_lshlrev_b32 {v(vT0)}, 3, {v(vT0)}")
        I(f"s_lshl_b32 s3, {s(sW)}, 7")
        I(f"v_add_u32 {v(vT0)}, s3, {v(vT0)}")
        I(f"v_lshlrev_b32 {v(vP0)}, 1, {v(vT0)}")
        I(f"v_mul_u32_u24 {v(vP1)}, 6144, {v(vT0)}")
        I(f"v_and_b32 {v(vT1)}, 3, {v(vL)}")
        I(f"v_lshlrev_b32 {v(vT1)}, 4, {v(vT1)}")
        I(f"s_lshl_b32 s3, {s(sM)}, 6")
        I(f"v_add3_u32 {v(vP1)}, {v(vP1)}, {v(vT1)}, s3")
        I(f"v_lshrrev_b32 {v(vT0)}, 3, {v(vL)}")
        I(f"v_lshlrev_b32 {v(vT0)}, 1, {v(vT0)}")
        I("s_lshr_b32 s3, s2, 5")
        I("s_lshl_b32 s3, s3, 2")
        I(f"s_add_u32 s3, s3, {s(sW)}")
        I("s_lshl_b32 s3, s3, 4")
        I(f"v_add_u32 {v(vT0)}, s3, {v(vT0)}")
        I(f"v_lshlrev_b32 {v(vP2)}, 1, {v(vT0)}")
        I(f"v_mul_u32_u24 {v(vP3)}, 6144, {v(vT0)}")
        I(f"v_and_b32 {v(vT2)}, 7, {v(vL)}")
        I(f"v_lshlrev_b32 {v(vT2)}, 4, {v(vT2)}")
        I("s_and_b32 s3, s2, 31")
        I("s_lshl_b32 s3, s3, 7")
        I("s_add_u32 s3, s3, 2048")
        I(f"v_add3_u32 {v(vP3)}, {v(vP3)}, {v(vT2)}, s3")
        I(f"v_lshrrev_b32 {v(vT0)}, 2, {v(vL)}")
        I(f"v_mul_u32_u24 {v(vP4)}, 3072, {v(vT0)}")
        I(f"s_and_b32 s3, {s(sM)}, 15")
        I("s_lshl_b32 s3, s3, 6")
        I(f"v_add3_u32 {v(vP4)}, {v(vP4)}, {v(vT1)}, s3")
        I("s_waitcnt lgkmcnt(0)")
        if self.opt.stamps:
            I(f"s_mov_b32 {s(sSTAMP+2)}, {s(sSTAMP)}")
            self.nstamp = 1
        self.srd(CC, 7, 1024)
        self.srd(WMOD, 8, 512 * 3072 * 2)
        I(f"s_load_dword {s(sTAG)}, {s(KA+22,2)}, {WS_E}")
        self.vmem(f"buffer_load_dwordx4 {v(48,4)}, {v(vP0)}, {s(CC,4)}, 0 offen", "c1")
        for i in range(8):
            if i:
                I(f"s_mov_b32 s3, {i*6144}")
            self.vmem(f"buffer_load_dwordx4 {v(16+4*i,4)}, {v(vP1)}, {s(WMOD,4)}, {'s3' if i else '0'} offen", f"w1_{i}")
        self.srd(X, 0, 2048 * 512 * 2)
        self.srd(WS, 11, WS_SIZE)
        I(f"s_lshl_b32 s3, {s(sG)}, 5")
        I(f"s_add_u32 s3, s3, {s(sM)}")
        I("s_lshl_b32 s3, s3, 2")
        I(f"s_add_u32 s3, s3, {s(sW)}")
        I(f"s_lshl_b32 {s(sP0)}, s3, 1")
        I(f"s_lshl_b32 s3, s3, 11")
        self.vmem(f"buffer_load_dwordx4 {v(64,4)}, {v(vL16)}, {s(X,4)}, s3 offen", "x0")
        self.vmem(f"buffer_load_dwordx4 {v(68,4)}, {v(vL16)}, {s(X,4)}, s3 offen offset:1024", "x1")
        self.vmem(f"buffer_load_dword {v(60)}, {v(vP2)}, {s(CC,4)}, 0 offen", "c2")
        self.vmem(f"buffer_load_dwordx4 {v(52,4)}, {v(vP3)}, {s(WMOD,4)}, 0 offen", "w2_0")
        I("s_mov_b32 s3, 6144")
        self.vmem(f"buffer_load_dwordx4 {v(56,4)}, {v(vP3)}, {s(WMOD,4)}, s3 offen", "w2_1")

    def early_srds(self):
        I = self.I
        self.srd(WQKV, 1, 512 * 1536 * 2)
        self.srd(WO, 2, 512 * 512 * 2)
        self.srd(WD, 6, 1792 * 512 * 2)
        self.srd(OUT, 9, 2048 * 512 * 2)
        I(f"s_bitcmp1_b32 {s(sW)}, 0")
        I(f"s_cselect_b32 {s(WGU)}, {s(KA+10)}, {s(KA+8)}")
        I(f"s_cselect_b32 {s(WGU+1)}, {s(KA+11)}, {s(KA+9)}")
        I(f"s_mov_b32 {s(WGU+2)}, {hex(512*1792*2)}")
        I(f"s_mov_b32 {s(WGU+3)}, 0x00020000")

    def silu(self, regs_):
        I = self.I
        n = len(regs_)
        t = [72 + i for i in range(n)]
        for r, q in zip(regs_, t):
            I(f"v_mul_f32 {v(q)}, {f32(-LOG2E)}, {v(r)}")
        for q in t:
            I(f"v_exp_f32 {v(q)}, {v(q)}")
        I("s_nop 0")
        for q in t:
            I(f"v_add_f32 {v(q)}, 1.0, {v(q)}")
        for q in t:
            I(f"v_rcp_f32 {v(q)}, {v(q)}")
        I("s_nop 0")
        for r, q in zip(regs_, t):
            I(f"v_mul_f32 {v(r)}, {v(r)}, {v(q)}")
        for i in range(0, n, 2):
            I(f"v_cvt_pk_bf16_f32 {v(t[i])}, {v(regs_[i])}, {v(regs_[i+1])}")
        for i in range(0, n, 2):
            self.unpack(regs_[i], regs_[i + 1], t[i])

    def gemv_rows(self, data, sreg, acc, first):
        I = self.I
        for j in range(4):
            self.unpack(96 + 2 * j, 97 + 2 * j, data + j)
        base = sreg & ~1
        sel = sreg & 1
        for j in range(4):
            if first:
                I(f"v_pk_mul_f32 {v(acc+2*j,2)}, {v(96+2*j,2)}, {v(base,2)} op_sel:[0,{sel}] op_sel_hi:[1,{sel}]")
            else:
                I(f"v_pk_fma_f32 {v(acc+2*j,2)}, {v(96+2*j,2)}, {v(base,2)}, {v(acc+2*j,2)} op_sel:[0,{sel},0] op_sel_hi:[1,{sel},1]")

    def lane_reduce8(self, acc, rors):
        I = self.I
        for r in rors:
            for j in range(8):
                self.dpp_add(acc + j, f"row_ror:{r}")
        I("s_nop 0")
        for j in range(4):
            I(f"v_permlane16_swap_b32 {v(acc+j)}, {v(acc+j+4)}")
        for j in range(4):
            I(f"v_add_f32 {v(acc+j)}, {v(acc+j)}, {v(acc+j+4)}")
        I("s_nop 0")
        for j in range(2):
            I(f"v_permlane32_swap_b32 {v(acc+j)}, {v(acc+j+2)}")
        for j in range(2):
            I(f"v_add_f32 {v(acc+j)}, {v(acc+j)}, {v(acc+j+2)}")

    def wave_sum2(self, r0, r1, t0, t1):
        I = self.I
        for ror in (8, 4, 2, 1):
            I("s_nop 0")
            self.dpp_add(r0, f"row_ror:{ror}")
            self.dpp_add(r1, f"row_ror:{ror}")
        for op in ("v_permlane16_swap_b32", "v_permlane32_swap_b32"):
            I(f"v_mov_b32 {v(t0)}, {v(r0)}")
            I(f"v_mov_b32 {v(t1)}, {v(r1)}")
            I("s_nop 0")
            I(f"{op} {v(r0)}, {v(t0)}")
            I(f"{op} {v(r1)}, {v(t1)}")
            I(f"v_add_f32 {v(r0)}, {v(r0)}, {v(t0)}")
            I(f"v_add_f32 {v(r1)}, {v(r1)}, {v(t1)}")

    def phaseA(self):
        I = self.I
        I("s_waitcnt lgkmcnt(0)")
        I(f"s_add_u32 {s(sTAG)}, {s(sTAG)}, 32")
        I(f"v_mov_b32 {v(vTAG)}, {s(sTAG)}")
        I(f"s_add_u32 s3, {s(sTAG)}, {s(sXCC)}")
        I(f"v_mov_b32 {v(vT0)}, s3")
        I(f"s_lshl_b32 {s(sT1)}, {s(sG)}, 8")
        I(f"s_lshl_b32 {s(sT2)}, {s(sM)}, 2")
        I(f"s_add_u32 {s(sP1)}, {s(sT1)}, {s(sT2)}")
        I(f"s_add_u32 s3, {s(sP1)}, {WS_XT}")
        self.vmem(f"buffer_store_dword {v(vT0)}, off, {s(WS,4)}, s3 sc1", "xt")
        I(f"s_mul_i32 {s(sT1)}, {s(sW)}, {8*49152}")
        I(f"s_lshl_b32 {s(sT2)}, {s(sW)}, 13")
        for kb in range(8):
            for t in range(3):
                self.dma(vP4, WQKV, (sT2, LDS_W + t * 32768 + kb * 1024), (sT1, kb * 49152 + t * 1024), "wdma")
        if self.opt.codepf:
            I(f"s_getpc_b64 {s(sCMP,2)}")
            self.label("L_pc")
            I(f"s_lshl_b32 s3, {s(sM)}, 2")
            I(f"s_add_u32 s3, s3, {s(sW)}")
            I(f"s_mul_i32 s3, s3, {self.opt.codepf}")
            I(f"v_lshlrev_b32 {v(vT1)}, 7, {v(vL)}")
            I(f"v_min_u32 {v(vT1)}, {self.opt.codepf-128}, {v(vT1)}")
            I(f"v_add_u32 {v(vT1)}, s3, {v(vT1)}")
            I(f"v_min_u32 {v(vT1)}, L_code_end-L_pc-4, {v(vT1)}")
            self.vmem(f"global_load_dword {v(61)}, {v(vT1)}, {s(sCMP,2)}", "cpf")
        I(f"v_lshrrev_b32 {v(vT0)}, 5, {v(vL)}")
        I(f"v_lshlrev_b32 {v(vT0)}, 3, {v(vT0)}")
        I(f"v_bfe_u32 {v(vT1)}, {v(vL)}, 2, 2")
        I(f"v_add_u32 {v(vP5)}, {v(vT0)}, {v(vT1)}")
        I(f"v_and_b32 {v(vT0)}, 1, {v(vL)}")
        I(f"v_lshlrev_b32 {v(vT0)}, 4, {v(vT0)}")
        I(f"v_and_b32 {v(vT1)}, 2, {v(vL)}")
        I(f"v_lshlrev_b32 {v(vT1)}, 2, {v(vT1)}")
        I(f"v_add_u32 {v(vP4)}, {v(vT0)}, {v(vT1)}")
        I(f"v_bfe_u32 {v(vT2)}, {v(vL)}, 4, 1")
        I(f"v_lshlrev_b32 {v(vT2)}, 5, {v(vT2)}")
        I(f"v_lshlrev_b32 {v(vT0)}, 6, {v(vP5)}")
        I(f"v_add3_u32 {v(vTR)}, {v(vT0)}, {v(vT2)}, {v(vP4)}")
        self.wait(vm="c1")
        for j in range(4):
            self.unpack(80 + 2 * j, 81 + 2 * j, 48 + j)
        self.silu(list(range(80, 88)))
        for i in range(8):
            self.wait(vm=f"w1_{i}")
            self.gemv_rows(16 + 4 * i, 80 + i, 104, i == 0)
        I("s_nop 0")
        self.lane_reduce8(104, (8, 4))
        I(f"v_lshrrev_b32 {v(vT0)}, 5, {v(vL)}")
        I(f"v_lshlrev_b32 {v(vT0)}, 3, {v(vT0)}")
        I(f"v_and_b32 {v(vT1)}, 16, {v(vL)}")
        I(f"v_add_u32 {v(vT3)}, {v(vT0)}, {v(vT1)}")
        I(f"v_and_b32 {v(vT0)}, 3, {v(vL)}")
        I(f"v_lshlrev_b32 {v(vT0)}, 5, {v(vT0)}")
        I(f"s_lshl_b32 s3, {s(sW)}, 7")
        I(f"s_add_u32 s3, s3, {LDS_RED}")
        I(f"v_add3_u32 {v(vT0)}, {v(vT0)}, {v(vT3)}, s3")
        self.lds(f"ds_write_b64 {v(vT0)}, {v(104,2)}")
        self.wait(vm="c2")
        self.unpack(88, 89, 60)
        self.silu([88, 89])
        for i in range(2):
            self.wait(vm=f"w2_{i}")
            self.gemv_rows(52 + 4 * i, 88 + i, 112, i == 0)
        I("s_nop 0")
        self.lane_reduce8(112, (8,))
        I(f"v_and_b32 {v(vT0)}, 7, {v(vL)}")
        I(f"v_lshlrev_b32 {v(vT0)}, 5, {v(vT0)}")
        I(f"s_lshl_b32 s3, {s(sW)}, 8")
        I(f"s_add_u32 s3, s3, {LDS_RED+512}")
        I(f"v_add3_u32 {v(vT0)}, {v(vT0)}, {v(vT3)}, s3")
        self.lds(f"ds_write_b64 {v(vT0)}, {v(112,2)}")
        self.wait(lg="all")
        I("s_barrier")
        self.stamp("A gemv done")
        I(f"v_and_b32 {v(vP0)}, 31, {v(vL)}")
        I(f"v_lshlrev_b32 {v(vP0)}, 2, {v(vP0)}")
        I(f"s_lshl_b32 {s(sT1)}, {s(sG)}, 8")
        I(f"s_add_u32 {s(sT2)}, {s(sT1)}, {WS_XT}")
        lp, done = self.newlab("L_xt"), self.newlab("L_xtgot")
        I(f"s_mov_b32 {s(sCNT)}, 0x100000")
        self.label(lp)
        I(f"buffer_load_dword {v(vT0)}, {v(vP0)}, {s(WS,4)}, {s(sT2)} offen sc1")
        I("s_waitcnt vmcnt(0)")
        self.vm.clear()
        I(f"v_subrev_u32 {v(vT0)}, {s(sTAG)}, {v(vT0)}")
        I(f"v_cmp_lt_u32 vcc, 15, {v(vT0)}")
        I(f"s_cbranch_vccz {done}")
        I(f"s_sub_u32 {s(sCNT)}, {s(sCNT)}, 1")
        I(f"s_cbranch_scc0 {lp}")
        self.label(done)
        I(f"v_cmp_ne_u32 vcc, {s(sXCC)}, {v(vT0)}")
        I("s_cmp_eq_u64 vcc, 0")
        I(f"s_cselect_b32 {s(sFAST)}, {0 if self.opt.slow else 1}, 0")
        n0, n1 = self.newlab("L_nw0"), self.newlab("L_nw1")
        I(f"s_cmp_lg_u32 {s(sW)}, 0")
        I(f"s_cbranch_scc1 {n0}")
        I(f"v_and_b32 {v(vT1)}, 15, {v(vL)}")
        I(f"v_lshlrev_b32 {v(vT0)}, 3, {v(vT1)}")
        I(f"v_add_u32 {v(vT0)}, {LDS_RED}, {v(vT0)}")
        for i in range(4):
            self.lds(f"ds_read_b64 {v(104+2*i,2)}, {v(vT0)} offset:{i*128}")
        I(f"s_cmp_ge_u32 {s(sM)}, 16")
        I(f"s_cselect_b32 s3, 1.0, 0")
        I(f"v_lshlrev_b32 {v(vT1)}, 2, {v(vT1)}")
        I(f"s_lshl_b32 {s(sT1)}, {s(sG)}, 11")
        I(f"s_lshl_b32 {s(sT2)}, {s(sM)}, 6")
        I(f"s_add_u32 {s(sT1)}, {s(sT1)}, {s(sT2)}")
        I(f"s_add_u32 {s(sT1)}, {s(sT1)}, {WS_MA}")
        I(f"s_add_u32 {s(sT2)}, {s(sP1)}, {WS_FA}")
        self.wait(lg="all")
        I(f"v_pk_add_f32 {v(104,2)}, {v(104,2)}, {v(106,2)}")
        I(f"v_pk_add_f32 {v(108,2)}, {v(108,2)}, {v(110,2)}")
        I(f"v_pk_add_f32 {v(104,2)}, {v(104,2)}, {v(108,2)}")
        I(f"v_cvt_pk_bf16_f32 {v(106)}, {v(104)}, {v(105)}")
        self.unpack(104, 105, 106)
        I(f"v_add_f32 {v(104)}, s3, {v(104)}")
        I(f"v_add_f32 {v(105)}, s3, {v(105)}")
        I(f"v_cvt_pk_bf16_f32 {v(106)}, {v(104)}, {v(105)}")
        self.publish(lambda fl: self.vmem(f"buffer_store_dword {v(106)}, {v(vT1)}, {s(WS,4)}, {s(sT1)} offen {fl}"), sT2, True)
        self.label(n0)
        I(f"s_cmp_lg_u32 {s(sW)}, 1")
        I(f"s_cbranch_scc1 {n1}")
        I(f"v_lshlrev_b32 {v(vT1)}, 2, {v(vL)}")
        I(f"v_add_u32 {v(vT0)}, {LDS_RED+512}, {v(vT1)}")
        for i in range(4):
            self.lds(f"ds_read_b32 {v(104+i)}, {v(vT0)} offset:{i*256}")
        I(f"s_lshr_b32 {s(sT3)}, s2, 5")
        I(f"s_and_b32 {s(sT4)}, s2, 31")
        I(f"s_lshl_b32 {s(sT1)}, {s(sT3)}, 13")
        I(f"s_lshl_b32 {s(sT2)}, {s(sT4)}, 8")
        I(f"s_add_u32 {s(sT1)}, {s(sT1)}, {s(sT2)}")
        I(f"s_add_u32 {s(sT1)}, {s(sT1)}, {WS_MP}")
        I(f"s_and_b32 {s(sT2)}, {s(sT4)}, 7")
        I(f"s_lshl_b32 {s(sT2)}, {s(sT2)}, 8")
        I(f"s_and_b32 {s(sT4)}, {s(sT4)}, 24")
        I(f"s_add_u32 {s(sT4)}, {s(sT4)}, {s(sT3)}")
        I(f"s_lshl_b32 {s(sT4)}, {s(sT4)}, 2")
        I(f"s_add_u32 {s(sT2)}, {s(sT2)}, {s(sT4)}")
        I(f"s_add_u32 {s(sT2)}, {s(sT2)}, {WS_FM}")
        self.wait(lg="all")
        I(f"v_add_f32 {v(104)}, {v(104)}, {v(105)}")
        I(f"v_add_f32 {v(106)}, {v(106)}, {v(107)}")
        I(f"v_add_f32 {v(104)}, {v(104)}, {v(106)}")
        self.publish(lambda fl: self.vmem(f"buffer_store_dword {v(104)}, {v(vT1)}, {s(WS,4)}, {s(sT1)} offen {fl}"), sT2, False)
        self.label(n1)
        self.vm = ["flag"]
        for r in range(2):
            for j in range(4):
                self.unpack(16 + 8 * r + 2 * j, 17 + 8 * r + 2 * j, 64 + 4 * r + j)
        for r in range(2):
            b = 16 + 8 * r
            I(f"v_pk_add_f32 {v(32+4*r,2)}, {v(b,2)}, {v(b+2,2)}")
            I(f"v_pk_add_f32 {v(34+4*r,2)}, {v(b+4,2)}, {v(b+6,2)}")
            I(f"v_pk_add_f32 {v(32+4*r,2)}, {v(32+4*r,2)}, {v(34+4*r,2)}")
            I(f"v_add_f32 {v(40+r)}, {v(32+4*r)}, {v(33+4*r)}")
        self.wave_sum2(40, 41, 42, 43)
        for r in range(2):
            I(f"v_mul_f32 {v(40+r)}, {f32(1/512)}, {v(40+r)}")
        for r in range(2):
            b = 16 + 8 * r
            for j in range(8):
                I(f"v_sub_f32 {v(32+j)}, {v(b+j)}, {v(40+r)}")
            I(f"v_mul_f32 {v(44+r)}, {v(32)}, {v(32)}")
            for j in range(1, 8):
                I(f"v_fmac_f32 {v(44+r)}, {v(32+j)}, {v(32+j)}")
        self.wave_sum2(44, 45, 42, 43)
        for r in range(2):
            self.ln_scalars(40 + r, 44 + r, True)
        for r in range(2):
            b = 16 + 8 * r
            for j in range(8):
                I(f"v_sub_f32 {v(b+j)}, {v(b+j)}, {v(40+r)}")
            for j in range(4):
                I(f"v_cvt_pk_bf16_f32 {v(32+j)}, {v(b+2*j)}, {v(b+2*j+1)}")
            for j in range(4):
                self.unpack(b + 2 * j, b + 2 * j + 1, 32 + j)
            for j in range(8):
                I(f"v_mul_f32 {v(b+j)}, {v(b+j)}, {v(44+r)}")
            for j in range(4):
                I(f"v_cvt_pk_bf16_f32 {v(32+j)}, {v(b+2*j)}, {v(b+2*j+1)}")
            for j in range(4):
                self.unpack(b + 2 * j, b + 2 * j + 1, 32 + j)
        I(f"v_lshlrev_b32 {v(vP1)}, 9, {v(vL)}")
        I(f"s_lshr_b32 {s(sT1)}, {s(sP0)}, 5")
        I(f"s_lshl_b32 {s(sT3)}, {s(sT1)}, 15")
        I(f"s_and_b32 {s(sT2)}, {s(sP0)}, 31")
        I(f"s_lshl_b32 {s(sT4)}, {s(sT2)}, 4")
        I(f"s_add_u32 {s(sT3)}, {s(sT3)}, {s(sT4)}")
        I(f"s_add_u32 {s(sT3)}, {s(sT3)}, {WS_H1}")
        I(f"s_lshl_b32 {s(sT4)}, {s(sT1)}, 7")
        I(f"s_lshl_b32 {s(sT2)}, {s(sT2)}, 1")
        I(f"s_add_u32 {s(sT4)}, {s(sT4)}, {s(sT2)}")
        I(f"s_add_u32 {s(sT4)}, {s(sT4)}, {WS_FH1}")
        I(f"s_lshl_b32 {s(sT1)}, {s(sG)}, 8")
        I(f"s_add_u32 {s(sT1)}, {s(sT1)}, {WS_FA}")
        I(f"s_lshl_b32 {s(sT2)}, {s(sG)}, 11")
        I(f"s_add_u32 {s(sT2)}, {s(sT2)}, {WS_MA}")
        self.poll(sT1, vP0)
        self.stamp("A mod ready")
        self.vmem(f"buffer_load_dwordx4 {v(32,4)}, {v(vL16)}, {s(WS,4)}, {s(sT2)} offen sc1", "sa")
        self.vmem(f"buffer_load_dwordx4 {v(36,4)}, {v(vL16)}, {s(WS,4)}, {s(sT2)} offen offset:1024 sc1", "ca")
        self.wait(vm="ca")
        for j in range(8):
            self.unpack(48 + 2 * j, 49 + 2 * j, 32 + j)
        for r in range(2):
            b = 16 + 8 * r
            for j in range(4):
                I(f"v_pk_fma_f32 {v(b+2*j,2)}, {v(b+2*j,2)}, {v(56+2*j,2)}, {v(48+2*j,2)}")
            for j in range(4):
                I(f"v_cvt_pk_bf16_f32 {v(32+4*r+j)}, {v(b+2*j)}, {v(b+2*j+1)}")

        def st(fl):
            self.vmem(f"buffer_store_dwordx4 {v(32,4)}, {v(vP1)}, {s(WS,4)}, {s(sT3)} offen {fl}")
            self.vmem(f"buffer_store_dwordx4 {v(36,4)}, {v(vP1)}, {s(WS,4)}, {s(sT3)} offen offset:16 {fl}")
        self.publish(st, sT4, True)
        self.stamp("A h1 published")

    def ln_scalars(self, mean, var, centered):
        I = self.I
        if centered:
            I(f"v_mul_f32 {v(var)}, {f32(1/512)}, {v(var)}")
        self.round_bf16(mean)
        self.round_bf16(var)
        I(f"v_add_f32 {v(var)}, {f32(1e-5)}, {v(var)}")
        self.round_bf16(var)
        I(f"v_sqrt_f32 {v(var)}, {v(var)}")
        I("s_nop 0")
        self.round_bf16(var)
        I(f"v_rcp_f32 {v(var)}, {v(var)}")
        I("s_nop 0")

    def phaseB(self):
        I = self.I
        I(f"s_lshr_b32 {s(sT1)}, {s(sM)}, 4")
        I(f"s_lshl_b32 {s(sT2)}, {s(sG)}, 1")
        I(f"s_add_u32 {s(sT1)}, {s(sT1)}, {s(sT2)}")
        I(f"s_lshl_b32 {s(sT1)}, {s(sT1)}, 2")
        I(f"s_add_u32 {s(sP2)}, {s(sT1)}, {s(sW)}")
        I(f"s_lshl_b32 {s(sT1)}, {s(sP2)}, 7")
        I(f"s_add_u32 {s(sT1)}, {s(sT1)}, {WS_FH1}")
        I(f"s_lshl_b32 {s(sT2)}, {s(sP2)}, 15")
        I(f"s_add_u32 {s(sT2)}, {s(sT2)}, {WS_H1}")
        I(f"v_and_b32 {v(vP1)}, 15, {v(vL)}")
        I(f"v_lshlrev_b32 {v(vP1)}, 2, {v(vP1)}")
        I(f"v_add_u32 {v(vP2)}, 0x10000, {v(vTR)}")
        self.poll(sT1, vP1)
        for ks in range(32):
            if ks % 4 == 0 and ks:
                I(f"s_add_u32 {s(sT2)}, {s(sT2)}, 4096")
            self.vmem(f"buffer_load_dwordx4 {a(4*ks,4)}, {v(vL16)}, {s(WS,4)}, {s(sT2)} offen offset:{(ks%4)*1024} sc1", f"h{ks}")
        I("s_barrier")
        self.stamp("B start")

        def wread(ks):
            buf = 16 + 12 * (ks % 3)
            for t in range(3):
                base, off = (vTR, t * 32768) if t < 2 else (vP2, 0)
                for hf in range(2):
                    self.lds(f"ds_read_b64_tr_b16 {v(buf+4*t+2*hf,2)}, {v(base)} offset:{LDS_W+off+ks*1024+hf*256}", f"w{ks}")
        wread(0)
        wread(1)
        for ks in range(32):
            buf = 16 + 12 * (ks % 3)
            self.wait(vm=f"h{ks}", lg=f"w{ks}")
            for t in range(3):
                acc = v(64 + 16 * t, 16)
                c = acc if ks else "0"
                if t < 2:
                    I(f"v_mfma_f32_32x32x16_bf16 {acc}, {v(buf+4*t,4)}, {a(4*ks,4)}, {c}")
                else:
                    I(f"v_mfma_f32_32x32x16_bf16 {acc}, {a(4*ks,4)}, {v(buf+4*t,4)}, {c}")
                if t == 0 and ks + 2 < 32:
                    wread(ks + 2)
        I("s_barrier")
        I(f"s_and_b32 {s(sT1)}, {s(sM)}, 15")
        I(f"s_lshl_b32 {s(sT2)}, {s(sT1)}, 17")
        I(f"s_lshl_b32 {s(sT3)}, {s(sP2)}, 10")
        I(f"s_add_u32 {s(sT2)}, {s(sT2)}, {s(sT3)}")
        I(f"s_add_u32 {s(sT3)}, {s(sT2)}, {WS_Q}")
        I(f"s_add_u32 {s(sT4)}, {s(sT3)}, 65536")
        I(f"s_lshl_b32 {s(sT2)}, {s(sT2)}, 1")
        I(f"s_add_u32 {s(sT5)}, {s(sT2)}, {WS_KV}")
        I(f"s_add_u32 {s(sT6)}, {s(sT5)}, 131072")
        I(f"s_lshl_b32 {s(sT1)}, {s(sT1)}, 8")
        I(f"s_lshl_b32 {s(sT7)}, {s(sP2)}, 2")
        I(f"s_add_u32 {s(sT7)}, {s(sT7)}, {s(sT1)}")
        I(f"s_add_u32 {s(sT7)}, {s(sT7)}, {WS_FB}")
        I(f"v_and_b32 {v(vT0)}, 0x33, {v(vL)}")
        I(f"v_and_b32 {v(vT1)}, 4, {v(vL)}")
        I(f"v_lshlrev_b32 {v(vT1)}, 1, {v(vT1)}")
        I(f"v_and_b32 {v(vT2)}, 8, {v(vL)}")
        I(f"v_lshrrev_b32 {v(vT2)}, 1, {v(vT2)}")
        I(f"v_or3_b32 {v(vT0)}, {v(vT0)}, {v(vT1)}, {v(vT2)}")
        I(f"v_lshlrev_b32 {v(vT0)}, 4, {v(vT0)}")
        I(f"v_lshrrev_b32 {v(vT1)}, 5, {v(vL)}")
        I(f"v_lshlrev_b32 {v(vT1)}, 8, {v(vT1)}")
        I(f"v_lshlrev_b32 {v(vT2)}, 2, {v(vP1)}")
        I(f"v_add_u32 {v(vP2)}, {v(vT1)}, {v(vT2)}")
        I(f"v_bfe_u32 {v(vT1)}, {v(vL)}, 4, 1")
        I(f"v_lshlrev_b32 {v(vT1)}, 17, {v(vT1)}")
        I(f"v_add_u32 {v(vT1)}, {v(vT1)}, {v(vP2)}")
        I(f"s_mov_b32 s3, {f32(0.25*LOG2E)}")
        for j in range(16):
            I(f"v_mul_f32 {v(64+j)}, s3, {v(64+j)}")
        for j in range(24):
            I(f"v_cvt_pk_bf16_f32 {v(16+j)}, {v(64+2*j)}, {v(65+2*j)}")

        def st(fl):
            self.vmem(f"buffer_store_dwordx4 {v(24,4)}, {v(vT0)}, {s(WS,4)}, {s(sT5)} offen {fl}")
            self.vmem(f"buffer_store_dwordx4 {v(28,4)}, {v(vT0)}, {s(WS,4)}, {s(sT6)} offen {fl}")
            self.vmem(f"buffer_store_dwordx4 {v(32,4)}, {v(vT1)}, {s(WS,4)}, {s(sT5)} offen offset:1024 {fl}")
            self.vmem(f"buffer_store_dwordx4 {v(36,4)}, {v(vT1)}, {s(WS,4)}, {s(sT5)} offen offset:1536 {fl}")
            self.vmem(f"buffer_store_dwordx4 {v(16,4)}, {v(vL16)}, {s(WS,4)}, {s(sT3)} offen {fl}")
            self.vmem(f"buffer_store_dwordx4 {v(20,4)}, {v(vL16)}, {s(WS,4)}, {s(sT4)} offen {fl}")
        self.stamp("B mfma done")
        self.publish(st, sT7, False)
        self.stamp("B published")

    S0 = 16; O0 = 64; KV0 = 192; NR = 4; Q0 = 128; EP0 = 240

    def e_dma_setup(self):
        I = self.I
        for n in range(448):
            assert (n * 4682) >> 16 == n // 14
        I(f"s_and_b32 s3, {s(sM)}, 15")
        I("s_mul_i32 s3, s3, 224")
        for i in range(7):
            r = self.EP0 + i
            I(f"v_add_u32 {v(vT0)}, {64*i}, {v(vL)}")
            I(f"v_mul_u32_u24 {v(vT1)}, 4682, {v(vT0)}")
            I(f"v_lshrrev_b32 {v(vT1)}, 16, {v(vT1)}")
            I(f"v_mul_u32_u24 {v(vT2)}, {3584-224}, {v(vT1)}")
            I(f"v_lshlrev_b32 {v(vT0)}, 4, {v(vT0)}")
            I(f"v_add3_u32 {v(r)}, {v(vT0)}, {v(vT2)}, s3")
        I(f"s_lshr_b32 s3, {s(sW)}, 1")
        I(f"s_mul_i32 {s(sP4)}, s3, {SLOT}")
        I(f"s_mul_i32 {s(sP5)}, s3, {32*3584}")
        I(f"s_and_b32 s3, {s(sW)}, 1")
        I("s_mul_i32 s3, s3, 7296")
        I(f"s_add_u32 {s(sP4)}, {s(sP4)}, s3")

    def e_dma(self, p, i):
        self.dma(self.EP0 + i, WGU, (sP4, (p % 5) * PAIR + i * 1024), (sP5, p * 64 * 3584), f"ep{p}")

    def phaseC(self):
        I = self.I
        S0, O0, KV0, NR, Q0 = self.S0, self.O0, self.KV0, self.NR, self.Q0
        I(f"s_and_b32 {s(sT1)}, {s(sM)}, 7")
        I(f"s_lshl_b32 {s(sT1)}, {s(sT1)}, 8")
        I(f"s_add_u32 {s(sT2)}, {s(sT1)}, {WS_FM}")
        I(f"s_lshl_b32 {s(sT3)}, {s(sW)}, 11")
        I(f"s_add_u32 {s(sT3)}, {s(sT3)}, {s(sT1)}")
        I(f"s_add_u32 {s(sT3)}, {s(sT3)}, {WS_MP}")
        I(f"v_lshlrev_b32 {v(vP3)}, 2, {v(vL)}")
        for r in range(128):
            I(f"v_mov_b32 {v(O0+r)}, 0")
        I(f"s_mov_b32 s3, 0x3f803f80")
        for j in range(NR):
            for r in range(8):
                I(f"v_mov_b32 {v(KV0+12*j+4+r)}, s3")
        I(f"v_mov_b32 {v(vIDX)}, 0xdddddddd")
        I(f"s_mov_b32 {s(sMSK)}, 0x0000ffff")
        I(f"s_mov_b32 {s(sMSK+1)}, 0x0000ffff")
        self.e_dma_setup()
        self.poll(sT2, vP0)
        for k in range(8):
            self.vmem(f"buffer_load_dword {v(16+k)}, {v(vP3)}, {s(WS,4)}, {s(sT3)} offen sc1", "mp")
            if k < 7:
                I(f"s_add_u32 {s(sT3)}, {s(sT3)}, 8192")
        I(f"s_and_b32 {s(sT1)}, {s(sM)}, 15")
        I(f"s_lshl_b32 {s(sT2)}, {s(sT1)}, 1")
        I(f"s_lshr_b32 {s(sT4)}, {s(sM)}, 4")
        I(f"s_add_u32 {s(sP0)}, {s(sT2)}, {s(sT4)}")
        I(f"s_lshl_b32 {s(sT1)}, {s(sT1)}, 8")
        I(f"s_add_u32 {s(sT1)}, {s(sT1)}, {WS_FB}")
        I(f"s_lshl_b32 {s(sT2)}, {s(sP0)}, 16")
        I(f"s_lshl_b32 {s(sT4)}, {s(sG)}, 13")
        I(f"s_add_u32 {s(sT4)}, {s(sT4)}, {s(sT2)}")
        I(f"s_add_u32 {s(sT4)}, {s(sT4)}, {WS_Q}")
        I(f"s_lshl_b32 {s(sT2)}, {s(sT2)}, 1")
        I(f"s_add_u32 {s(sP3)}, {s(sT2)}, {WS_KV}")
        I(f"s_lshl_b32 {s(sT5)}, {s(sW)}, 11")
        I(f"s_add_u32 {s(sP1)}, {s(sP3)}, {s(sT5)}")
        I(f"s_cmp_eq_u32 {s(sW)}, 2")
        I(f"s_cselect_b32 {s(sT6)}, 1.0, 0")
        I(f"s_lshl_b32 {s(sT5)}, {s(sW)}, 8")
        I(f"s_add_u32 {s(sT5)}, {s(sT5)}, {LDS_MOD}")
        I(f"v_add_u32 {v(vT1)}, {s(sT5)}, {v(vP3)}")
        self.wait(vm="mp")
        I(f"v_pk_add_f32 {v(16,2)}, {v(16,2)}, {v(18,2)}")
        I(f"v_pk_add_f32 {v(20,2)}, {v(20,2)}, {v(22,2)}")
        I(f"v_pk_add_f32 {v(16,2)}, {v(16,2)}, {v(20,2)}")
        I(f"v_add_f32 {v(16)}, {v(16)}, {v(17)}")
        self.round_bf16(16)
        I(f"v_add_f32 {v(16)}, {s(sT6)}, {v(16)}")
        self.round_bf16(16)
        self.lds(f"ds_write_b32 {v(vT1)}, {v(16)}")
        self.poll(sT1, vP3)
        self.stamp("C kv ready")

        def kvload(j, parts="kv"):
            b = KV0 + 12 * (j % NR)
            I(f"s_lshl_b32 s3, {s(sG)}, 1")
            I(f"s_add_u32 s3, s3, {j}")
            I("s_and_b32 s3, s3, 15")
            I("s_lshl_b32 s3, s3, 13")
            I(f"s_add_u32 s3, s3, {s(sP1)}")
            self.vmem(f"buffer_load_dwordx4 {v(b,4)}, {v(vL16)}, {s(WS,4)}, s3 offen sc1", f"k{j}")
            I(f"s_mov_b64 exec, {s(sMSK,2)}")
            self.vmem(f"buffer_load_dwordx4 {v(b+4,4)}, {v(vP2)}, {s(WS,4)}, s3 offen offset:1024 sc1", f"v{j}")
            self.vmem(f"buffer_load_dwordx4 {v(b+8,4)}, {v(vP2)}, {s(WS,4)}, s3 offen offset:1536 sc1", f"v{j}")
            I("s_mov_b64 exec, -1")

        def qload(q):
            I(f"s_lshl_b32 s3, {s(sW)}, 1")
            I(f"s_add_u32 s3, s3, {q+2}")
            I("s_and_b32 s3, s3, 7")
            I("s_lshl_b32 s3, s3, 10")
            I(f"s_add_u32 s3, s3, {s(sT4)}")
            self.vmem(f"buffer_load_dwordx4 {a(Q0+4*q,4)}, {v(vL16)}, {s(WS,4)}, s3 offen sc1", f"q{q}")
        qload(0)
        kvload(0)
        for q in range(1, 8):
            qload(q)
        for j in range(1, NR):
            kvload(j)

        I(f"v_lshrrev_b32 {v(vT0)}, 2, {v(vL)}")
        I(f"v_lshlrev_b32 {v(vT0)}, 10, {v(vT0)}")
        I(f"v_and_b32 {v(vT1)}, 3, {v(vL)}")
        I(f"v_lshlrev_b32 {v(vT1)}, 4, {v(vT1)}")
        I(f"s_and_b32 s3, {s(sM)}, 7")
        I("s_lshl_b32 s3, s3, 7")
        I(f"v_add3_u32 {v(247)}, {v(vT0)}, {v(vT1)}, s3")
        I(f"s_lshl_b32 {s(sT5)}, {s(sW)}, 14")
        I(f"s_add_u32 {s(sT5)}, {s(sT5)}, {LDS_WO}")
        I(f"s_lshl_b32 {s(sT6)}, {s(sW)}, 17")
        I(f"s_lshr_b32 s3, {s(sW)}, 1")
        I("s_lshl_b32 s3, s3, 10")
        I(f"s_add_u32 s3, s3, {LDS_WO}")
        I(f"v_add_u32 {v(248)}, s3, {v(vTR)}")
        I(f"s_mul_i32 s3, {s(sW)}, 13824")
        I(f"s_add_u32 s3, s3, {LDS_OR}")
        I(f"v_add_u32 {v(249)}, s3, {v(vL16)}")
        I(f"v_add_u32 {v(250)}, s3, {v(vP3)}")
        for r in range(3):
            I(f"s_add_u32 s3, {s(sW)}, {r+1}")
            I("s_and_b32 s3, s3, 3")
            I("s_mul_i32 s3, s3, 13824")
            I(f"s_add_u32 s3, s3, {LDS_OR + r*4608}")
            I(f"v_add_u32 {v(251+r)}, s3, {v(vL16)}")
        I(f"v_sub_u32 {v(254)}, {v(vP3)}, {v(vL16)}")

        fill = {}

        def add(u, pos, fn):
            fill.setdefault((u, pos), []).append(fn)
        for n in range(16):
            add(n // 2, n % 2, lambda n=n: self.dma(247, WO, (sT5, n * 1024), (sT6, (n // 2) * 16384 + (n % 2) * 64), "wo"))
        n = 0
        for p in range(3):
            for i in range(7):
                add(34 + n, 0, lambda p=p, i=i: self.e_dma(p, i))
                n += 1

        def bar_wo():
            self.wait(vm="wo")
            I("s_barrier")
        add(17, 1, bar_wo)
        for n in range(32):
            def rd(n=n):
                for hf in range(2):
                    self.lds(f"ds_read_b64_tr_b16 {a(4*n+2*hf,2)}, {v(248)} offset:{n*2048+hf*256}", "wo")
            add(18 + n // 2, n % 2, rd)

        def bar_wo2():
            self.wait(lg="all")
            I("s_barrier")
        add(60, 1, bar_wo2)
        for q in range(6):
            def dump(q=q):
                ad = 251 + q // 2
                o = O0 + 16 * q
                self.lds(f"ds_write_b128 {v(ad)}, {v(o,4)} offset:{(q&1)*2304}")
                self.lds(f"ds_write_b128 {v(ad)}, {v(o+4,4)} offset:{(q&1)*2304+1024}")
                I(f"v_add_u32 {v(vT0)}, {v(ad)}, {v(254)}")
                self.lds(f"ds_write_b32 {v(vT0)}, {v(o+8)} offset:{(q&1)*2304+2048}")
            add(122 + q, 0, dump)
        for j in range(16 - NR):
            add(8 * (j + 1), 0, lambda j=j: kvload(j + NR))

        Sr = lambda u, lo=0, n=16: v(S0 + 16 * (u % 3) + lo, n)
        Kr = lambda u: v(KV0 + 12 * ((u // 8) % NR), 4)
        Vr = lambda u, f: v(KV0 + 12 * ((u // 8) % NR) + 4 + 4 * f, 4)
        Or = lambda u: v(O0 + 16 * (u % 8), 16)

        def qk(u):
            if u % 8 == 0:
                self.wait(vm=f"v{u//8}")
            if u < 8:
                self.wait(vm=f"q{u}")
            I(f"v_mfma_f32_32x32x16_bf16 {Sr(u)}, {Kr(u)}, {a(Q0+4*(u%8),4)}, 0")
        qk(0)
        self.nop(11)
        I(".p2align 3")
        for u in range(128):
            for i in range(16):
                if i == 0 and u + 1 < 128:
                    qk(u + 1)
                if i == 4:
                    if u > 0:
                        I(f"v_smfmac_f32_32x32x32_bf16 {Or(u-1)}, {Vr(u-1,1)}, {Sr(u-1,8,8)}, {v(vIDX)}")
                    for fn in fill.get((u, 0), []):
                        fn()
                if i == 10:
                    I(f"v_smfmac_f32_32x32x32_bf16 {Or(u)}, {Vr(u,0)}, {Sr(u,0,8)}, {v(vIDX)}")
                    for fn in fill.get((u, 1), []):
                        fn()
                r = S0 + 16 * (u % 3) + i
                I(f"v_exp_f32 {v(r)}, {v(r)}")
        I("s_nop 1")
        I(f"v_smfmac_f32_32x32x32_bf16 {Or(127)}, {Vr(127,1)}, {Sr(127,8,8)}, {v(vIDX)}")
        self.wait(lg="all")
        I("s_barrier")
        self.stamp("C loop done")
        T = 64
        for par in range(2):
            for r in range(3):
                b = T + 36 * par + 12 * r
                off = r * 4608 + par * 2304
                self.lds(f"ds_read_b128 {v(b,4)}, {v(249)} offset:{off}", f"r{par}")
                self.lds(f"ds_read_b128 {v(b+4,4)}, {v(249)} offset:{off+1024}", f"r{par}")
                self.lds(f"ds_read_b32 {v(b+8)}, {v(250)} offset:{off+2048}", f"r{par}")
        I(f"s_lshl_b32 {s(sT1)}, {s(sG)}, 2")
        I(f"s_add_u32 {s(sT1)}, {s(sT1)}, {s(sW)}")
        I(f"s_lshl_b32 {s(sT2)}, {s(sT1)}, 16")
        I(f"s_lshl_b32 {s(sT3)}, {s(sP0)}, 10")
        I(f"s_add_u32 {s(sT2)}, {s(sT2)}, {s(sT3)}")
        I(f"s_add_u32 {s(sT2)}, {s(sT2)}, {WS_O}")
        I(f"s_add_u32 {s(sT3)}, {s(sT2)}, 32768")
        I(f"s_lshl_b32 {s(sT1)}, {s(sT1)}, 7")
        I(f"s_lshl_b32 {s(sT4)}, {s(sP0)}, 2")
        I(f"s_add_u32 {s(sT1)}, {s(sT1)}, {s(sT4)}")
        I(f"s_add_u32 {s(sT1)}, {s(sT1)}, {WS_FC}")
        I(f"s_mov_b32 {s(sT4)}, {f32(2.0**-30)}")
        I(f"s_mov_b32 {s(sT5)}, {f32(2.0**40)}")
        for par in range(2):
            o = O0 + 16 * (6 + par)
            self.wait(lg=f"r{par}")
            for r in range(3):
                b = T + 36 * par + 12 * r
                for j in range(4):
                    I(f"v_pk_add_f32 {v(o+2*j,2)}, {v(o+2*j,2)}, {v(b+2*j,2)}")
                I(f"v_add_f32 {v(o+8)}, {v(o+8)}, {v(b+8)}")
        for par in range(2):
            o = O0 + 16 * (6 + par)
            t = T + par
            I(f"v_add_f32 {v(t)}, abs({v(o)}), abs({v(o+1)})")
            for j in range(2, 8):
                I(f"v_add_f32 {v(t)}, {v(t)}, abs({v(o+j)})")
        I(f"v_add_f32 {v(T)}, {v(T)}, {v(T+1)}")
        I(f"v_min_f32 {v(T+2)}, {v(O0+96+8)}, {v(O0+112+8)}")
        I(f"v_add_f32 {v(T+3)}, {v(O0+96+8)}, {v(O0+112+8)}")
        I(f"v_cmp_nle_f32 {s(sCMP,2)}, {s(sT4)}, {v(T+2)}")
        I(f"v_cmp_nge_f32 {s(sCMP+2,2)}, {s(sT5)}, {v(T+3)}")
        I(f"v_mov_b32 {v(T+2)}, 0x207")
        I(f"v_cmp_class_f32 vcc, {v(T)}, {v(T+2)}")
        I(f"s_or_b64 {s(sCMP,2)}, {s(sCMP,2)}, {s(sCMP+2,2)}")
        I(f"s_or_b64 vcc, vcc, {s(sCMP,2)}")
        if self.opt.forcefb:
            I("s_branch L_fallback")
        else:
            I("s_cbranch_vccnz L_fallback")
        self.label("L_norm")
        for par in range(2):
            o = O0 + 16 * (6 + par)
            I(f"v_rcp_f32 {v(o+8)}, {v(o+8)}")
        I("s_nop 0")
        for par in range(2):
            o = O0 + 16 * (6 + par)
            for j in range(4):
                I(f"v_pk_mul_f32 {v(o+2*j,2)}, {v(o+2*j,2)}, {v(o+8,2)} op_sel_hi:[1,0]")
            for j in range(4):
                I(f"v_cvt_pk_bf16_f32 {v(T+4*par+j)}, {v(o+2*j)}, {v(o+2*j+1)}")

        def st(fl):
            self.vmem(f"buffer_store_dwordx4 {v(T,4)}, {v(vL16)}, {s(WS,4)}, {s(sT2)} offen {fl}")
            self.vmem(f"buffer_store_dwordx4 {v(T+4,4)}, {v(vL16)}, {s(WS,4)}, {s(sT3)} offen {fl}")
        self.publish(st, sT1, True)
        self.stamp("C published")

    def fallback(self):
        I = self.I
        S0, O0, KV0, Q0 = self.S0, self.O0, self.KV0, self.Q0
        self.label("L_fallback")
        I("s_waitcnt vmcnt(0) lgkmcnt(0)")
        for par in range(2):
            o = O0 + 16 * (6 + par)
            q = a(Q0 + 4 * (6 + par), 4)
            l1, l2 = self.newlab("L_fb1"), self.newlab("L_fb2")
            I(f"v_mov_b32 {v(48)}, 0xff800000")
            I(f"s_mov_b32 s3, {s(sP3)}")
            I(f"s_mov_b32 {s(sCNT)}, 64")
            self.label(l1)
            I(f"buffer_load_dwordx4 {v(KV0,4)}, {v(vL16)}, {s(WS,4)}, s3 offen sc1")
            I("s_waitcnt vmcnt(0)")
            I(f"v_mfma_f32_32x32x16_bf16 {v(S0,16)}, {v(KV0,4)}, {q}, 0")
            self.nop(12)
            for j in range(8):
                I(f"v_max3_f32 {v(48)}, {v(S0+2*j)}, {v(S0+2*j+1)}, {v(48)}")
            I("s_add_u32 s3, s3, 2048")
            I(f"s_sub_u32 {s(sCNT)}, {s(sCNT)}, 1")
            I(f"s_cmp_lg_u32 {s(sCNT)}, 0")
            I(f"s_cbranch_scc1 {l1}")
            I(f"v_mov_b32 {v(49)}, {v(48)}")
            I("s_nop 1")
            I(f"v_permlane32_swap_b32 {v(48)}, {v(49)}")
            I(f"v_max_f32 {v(48)}, {v(48)}, {v(49)}")
            for j in range(16):
                I(f"v_sub_f32 {v(32+j)}, 0, {v(48)}")
            for j in range(16):
                I(f"v_mov_b32 {v(o+j)}, 0")
            I(f"s_mov_b32 s3, {s(sP3)}")
            I(f"s_mov_b32 {s(sCNT)}, 64")
            self.label(l2)
            I(f"buffer_load_dwordx4 {v(KV0,4)}, {v(vL16)}, {s(WS,4)}, s3 offen sc1")
            I(f"s_mov_b64 exec, {s(sMSK,2)}")
            I(f"buffer_load_dwordx4 {v(KV0+4,4)}, {v(vP2)}, {s(WS,4)}, s3 offen offset:1024 sc1")
            I(f"buffer_load_dwordx4 {v(KV0+8,4)}, {v(vP2)}, {s(WS,4)}, s3 offen offset:1536 sc1")
            I("s_mov_b64 exec, -1")
            I("s_waitcnt vmcnt(0)")
            I(f"v_mfma_f32_32x32x16_bf16 {v(S0,16)}, {v(KV0,4)}, {q}, {v(32,16)}")
            self.nop(12)
            for j in range(16):
                I(f"v_exp_f32 {v(S0+j)}, {v(S0+j)}")
            I("s_nop 1")
            I(f"v_smfmac_f32_32x32x32_bf16 {v(o,16)}, {v(KV0+4,4)}, {v(S0,8)}, {v(vIDX)}")
            I(f"v_smfmac_f32_32x32x32_bf16 {v(o,16)}, {v(KV0+8,4)}, {v(S0+8,8)}, {v(vIDX)}")
            I("s_add_u32 s3, s3, 2048")
            I(f"s_sub_u32 {s(sCNT)}, {s(sCNT)}, 1")
            I(f"s_cmp_lg_u32 {s(sCNT)}, 0")
            I(f"s_cbranch_scc1 {l2}")
            self.nop(12)
        I("s_branch L_norm")

    X1 = 232

    def phaseD(self):
        I = self.I
        I(f"s_lshr_b32 {s(sT1)}, {s(sM)}, 3")
        I(f"s_lshl_b32 {s(sT2)}, {s(sG)}, 2")
        I(f"s_add_u32 {s(sT1)}, {s(sT1)}, {s(sT2)}")
        I(f"s_lshl_b32 {s(sT2)}, {s(sT1)}, 1")
        I(f"s_and_b32 {s(sT3)}, {s(sW)}, 1")
        I(f"s_add_u32 {s(sP0)}, {s(sT2)}, {s(sT3)}")
        I(f"s_and_b32 {s(sT2)}, {s(sM)}, 7")
        I(f"s_lshl_b32 {s(sT2)}, {s(sT2)}, 1")
        I(f"s_lshr_b32 {s(sT3)}, {s(sW)}, 1")
        I(f"s_add_u32 {s(sP1)}, {s(sT2)}, {s(sT3)}")
        I(f"s_lshl_b32 {s(sT1)}, {s(sT1)}, 7")
        I(f"s_add_u32 {s(sT1)}, {s(sT1)}, {WS_FC}")
        I(f"v_and_b32 {v(vT0)}, 31, {v(vL)}")
        I(f"v_lshlrev_b32 {v(vT0)}, 10, {v(vT0)}")
        I(f"v_lshrrev_b32 {v(vT1)}, 5, {v(vL)}")
        I(f"v_lshlrev_b32 {v(vT2)}, 4, {v(vT1)}")
        I(f"v_add_u32 {v(249)}, {v(vT0)}, {v(vT2)}")
        I(f"s_lshl_b32 {s(sT2)}, {s(sP0)}, 15")
        I(f"s_lshl_b32 {s(sT4)}, {s(sP1)}, 6")
        I(f"s_add_u32 {s(sP3)}, {s(sT2)}, {s(sT4)}")
        self.vmem(f"buffer_load_dwordx4 {v(32,4)}, {v(249)}, {s(X,4)}, {s(sP3)} offen", "x")
        self.vmem(f"buffer_load_dwordx4 {v(36,4)}, {v(249)}, {s(X,4)}, {s(sP3)} offen offset:32", "x")
        I(f"v_lshlrev_b32 {v(vT1)}, 5, {v(vT1)}")
        I(f"s_lshl_b32 s3, {s(sT3)}, 7")
        I(f"s_add_u32 s3, s3, {LDS_MOD}")
        I(f"v_add_u32 {v(250)}, s3, {v(vT1)}")
        I("s_barrier")
        for vec, dst in ((0, 40), (1, 208), (2, 192)):
            for j in range(4):
                self.lds(f"ds_read_b128 {v(dst+4*j,4)}, {v(250)} offset:{vec*256 + (j//2)*64 + (j%2)*16}", "mod")
        I(f"s_add_u32 {s(sT2)}, {s(sT2)}, {WS_O}")
        self.poll(sT1, vP0)
        self.stamp("D start")
        for ks in range(32):
            if ks % 4 == 0 and ks:
                I(f"s_add_u32 {s(sT2)}, {s(sT2)}, 4096")
            self.vmem(f"buffer_load_dwordx4 {v(64+4*ks,4)}, {v(vL16)}, {s(WS,4)}, {s(sT2)} offen offset:{(ks%4)*1024} sc1", f"o{ks}")
        for p in (3, 4):
            for i in range(7):
                self.e_dma(p, i)
        I(f"s_lshl_b32 {s(sT1)}, {s(sP0)}, 12")
        I(f"s_add_u32 {s(sT1)}, {s(sT1)}, {WS_ST}")
        I(f"s_lshl_b32 {s(sT2)}, {s(sP1)}, 8")
        I(f"s_add_u32 {s(sT2)}, {s(sT2)}, {s(sT1)}")
        I(f"s_lshl_b32 {s(sT3)}, {s(sP0)}, 7")
        I(f"s_add_u32 {s(sT4)}, {s(sT3)}, {WS_FS}")
        I(f"s_lshl_b32 {s(sT5)}, {s(sP1)}, 2")
        I(f"s_add_u32 {s(sT6)}, {s(sT4)}, {s(sT5)}")
        I(f"s_add_u32 {s(sT7)}, {s(sT6)}, {WS_FH2-WS_FS}")
        I(f"s_lshl_b32 {s(sT3)}, {s(sP0)}, 15")
        I(f"s_lshl_b32 {s(sT5)}, {s(sP1)}, 11")
        I(f"s_add_u32 {s(sT3)}, {s(sT3)}, {s(sT5)}")
        I(f"s_add_u32 {s(sT3)}, {s(sT3)}, {WS_H2}")
        I(f"v_lshlrev_b32 {v(vT1)}, 1, {v(vP0)}")
        I(f"v_lshrrev_b32 {v(vT2)}, 5, {v(vL)}")
        I(f"v_lshlrev_b32 {v(vT2)}, 11, {v(vT2)}")
        I(f"v_add_u32 {v(vT2)}, {v(vT2)}, {v(vT1)}")
        for ks in range(32):
            self.wait(vm=f"o{ks}")
            I(f"v_mfma_f32_32x32x16_bf16 {v(16,16)}, {a(4*ks,4)}, {v(64+4*ks,4)}, {v(16,16) if ks else '0'}")
        self.wait(lg="mod")
        for j in range(8):
            self.unpack(64 + 2 * j, 65 + 2 * j, 32 + j)
        self.nop(12 - 8)
        for j in range(8):
            I(f"v_cvt_pk_bf16_f32 {v(32+j)}, {v(16+2*j)}, {v(17+2*j)}")
        for j in range(8):
            self.unpack(16 + 2 * j, 17 + 2 * j, 32 + j)
        for j in range(8):
            I(f"v_pk_mul_f32 {v(16+2*j,2)}, {v(16+2*j,2)}, {v(40+2*j,2)}")
        for j in range(8):
            I(f"v_cvt_pk_bf16_f32 {v(32+j)}, {v(16+2*j)}, {v(17+2*j)}")
        for j in range(8):
            self.unpack(16 + 2 * j, 17 + 2 * j, 32 + j)
        for j in range(8):
            I(f"v_pk_add_f32 {v(16+2*j,2)}, {v(16+2*j,2)}, {v(64+2*j,2)}")
        for j in range(8):
            I(f"v_cvt_pk_bf16_f32 {v(self.X1+j)}, {v(16+2*j)}, {v(17+2*j)}")
        for j in range(8):
            self.unpack(16 + 2 * j, 17 + 2 * j, self.X1 + j)
        I(f"v_pk_mul_f32 {v(34,2)}, {v(16,2)}, {v(16,2)}")
        I(f"v_pk_add_f32 {v(32,2)}, {v(16,2)}, {v(18,2)}")
        for j in range(1, 8):
            I(f"v_pk_fma_f32 {v(34,2)}, {v(16+2*j,2)}, {v(16+2*j,2)}, {v(34,2)}")
            if j > 1:
                I(f"v_pk_add_f32 {v(32,2)}, {v(32,2)}, {v(16+2*j,2)}")
        I(f"v_add_f32 {v(32)}, {v(32)}, {v(33)}")
        I(f"v_add_f32 {v(33)}, {v(34)}, {v(35)}")
        I(f"v_mov_b32 {v(34)}, {v(32)}")
        I(f"v_mov_b32 {v(35)}, {v(33)}")
        I("s_nop 0")
        I(f"v_permlane32_swap_b32 {v(32)}, {v(34)}")
        I(f"v_permlane32_swap_b32 {v(33)}, {v(35)}")
        I(f"v_pk_add_f32 {v(32,2)}, {v(32,2)}, {v(34,2)}")
        self.stamp("D mfma done")
        self.publish(lambda fl: self.vmem(f"buffer_store_dwordx2 {v(32,2)}, {v(vT1)}, {s(WS,4)}, {s(sT2)} offen {fl}"), sT6, True)
        self.poll(sT4, vP1)
        for j in range(8):
            self.vmem(f"buffer_load_dwordx2 {v(64+2*j,2)}, {v(vT2)}, {s(WS,4)}, {s(sT1)} offen offset:{j*256} sc1", "st")
        self.wait(vm="st")
        for j in range(4):
            I(f"v_pk_add_f32 {v(64+2*j,2)}, {v(64+2*j,2)}, {v(72+2*j,2)}")
        for j in range(2):
            I(f"v_pk_add_f32 {v(64+2*j,2)}, {v(64+2*j,2)}, {v(68+2*j,2)}")
        I(f"v_pk_add_f32 {v(32,2)}, {v(64,2)}, {v(66,2)}")
        I(f"v_mov_b32 {v(34)}, {v(32)}")
        I(f"v_mov_b32 {v(35)}, {v(33)}")
        I("s_nop 0")
        I(f"v_permlane32_swap_b32 {v(32)}, {v(34)}")
        I(f"v_permlane32_swap_b32 {v(33)}, {v(35)}")
        I(f"v_pk_add_f32 {v(32,2)}, {v(32,2)}, {v(34,2)}")
        I(f"v_mul_f32 {v(32)}, {f32(1/512)}, {v(32)}")
        I(f"v_mul_f32 {v(33)}, {f32(1/512)}, {v(33)}")
        I(f"v_fma_f32 {v(34)}, -{v(32)}, {v(32)}, {v(33)}")
        I(f"v_max_f32 {v(34)}, 0, {v(34)}")
        self.ln_scalars(32, 34, False)
        I(f"v_mul_f32 {v(32)}, {v(32)}, {v(34)}")
        for j in range(8):
            I(f"v_pk_fma_f32 {v(16+2*j,2)}, {v(16+2*j,2)}, {v(34,2)}, {v(32,2)} op_sel_hi:[1,0,0] neg_lo:[0,0,1] neg_hi:[0,0,1]")
        for j in range(8):
            I(f"v_pk_fma_f32 {v(16+2*j,2)}, {v(16+2*j,2)}, {v(192+2*j,2)}, {v(208+2*j,2)}")
        for j in range(8):
            I(f"v_cvt_pk_bf16_f32 {v(40+j)}, {v(16+2*j)}, {v(17+2*j)}")

        def st(fl):
            self.vmem(f"buffer_store_dwordx4 {v(40,4)}, {v(vL16)}, {s(WS,4)}, {s(sT3)} offen {fl}")
            self.vmem(f"buffer_store_dwordx4 {v(44,4)}, {v(vL16)}, {s(WS,4)}, {s(sT3)} offen offset:1024 {fl}")
        self.publish(st, sT7, True)
        self.stamp("D published")

    def wd_slot(self, n):
        n %= 18
        return 87552 + n * 8192 if n < 8 else (n - 8) * 8192

    def wd_dma(self, n):
        for c in range(2):
            self.dma(247, WD, (sT6, self.wd_slot(n) + c * 1024), (sT7, n * 16384 + c * 64), f"wd{n}")

    def phaseE(self):
        I = self.I
        ACC = 64; WB = 176
        I(f"s_lshl_b32 {s(sT1)}, {s(sP2)}, 7")
        I(f"s_add_u32 {s(sT1)}, {s(sT1)}, {WS_FH2}")
        I(f"s_lshl_b32 {s(sT2)}, {s(sP2)}, 15")
        I(f"s_add_u32 {s(sT2)}, {s(sT2)}, {WS_H2}")
        I(f"v_mul_u32_u24 {v(vT0)}, 224, {v(vP5)}")
        I(f"v_bfe_u32 {v(vT1)}, {v(vL)}, 4, 1")
        I(f"v_mul_u32_u24 {v(vT1)}, 7296, {v(vT1)}")
        I(f"v_add3_u32 {v(251)}, {v(vT0)}, {v(vT1)}, {v(vP4)}")
        I(f"v_add_u32 {v(252)}, {2*PAIR}, {v(251)}")
        I(f"v_add_u32 {v(253)}, {4*PAIR}, {v(251)}")
        I(f"s_lshl_b32 {s(sT6)}, {s(sW)}, 11")
        I(f"s_mul_i32 {s(sT7)}, {s(sW)}, {448*1024}")
        self.poll(sT1, vP1)
        for ks in range(32):
            if ks % 4 == 0 and ks:
                I(f"s_add_u32 {s(sT2)}, {s(sT2)}, 4096")
            self.vmem(f"buffer_load_dwordx4 {a(4*ks,4)}, {v(vL16)}, {s(WS,4)}, {s(sT2)} offen offset:{(ks%4)*1024} sc1", f"h{ks}")
        I("s_barrier")
        self.stamp("E start")

        def wread(ks, t):
            pos = (ks // 4) % 5
            base = 251 + pos // 2
            off = (pos % 2) * PAIR + ((ks // 2) % 2) * SLOT + (ks % 2) * 3584 + t * 32
            buf = WB + 28 * (ks % 2) + 4 * t
            for hf in range(2):
                self.lds(f"ds_read_b64_tr_b16 {v(buf+2*hf,2)}, {v(base)} offset:{off+hf*896}", f"w{ks}_{t}")
        for t in range(7):
            wread(0, t)
        side = {}
        for k, p in ((4, 5), (8, 6), (12, 7)):
            for i in range(7):
                side.setdefault((k, i), []).append(lambda p=p, i=i: self.e_dma(p, i))
        wd_at = {19: (0, 1, 2), 23: (3, 4, 5), 24: (6, 7), 27: (8, 9, 10), 30: (11, 12, 13, 14)}
        for k, ns in wd_at.items():
            for i, n in enumerate(ns):
                side.setdefault((k, i), []).append(lambda n=n: self.wd_dma(n))
        for ks in range(32):
            if ks in (4, 8, 12, 29):
                I("s_barrier")
            if ks in (18, 22, 26):
                self.wait(vm=f"ep{5 + (ks-18)//4}")
                I("s_barrier")
            for t in range(7):
                self.wait(vm=f"h{ks}" if t == 0 else None, lg=f"w{ks}_{t}")
                acc = v(ACC + 16 * t, 16)
                I(f"v_mfma_f32_32x32x16_bf16 {acc}, {v(WB+28*(ks%2)+4*t,4)}, {a(4*ks,4)}, {acc if ks else '0'}")
                if ks + 1 < 32:
                    wread(ks + 1, t)
                for fn in side.get((ks, t), []):
                    fn()
        I("s_barrier")
        for n in (15, 16, 17):
            self.wd_dma(n)
        self.stamp("E mfma done")
        I(f"s_mul_i32 {s(sT1)}, {s(sP2)}, {112*1024}")
        I(f"s_and_b32 {s(sT2)}, {s(sM)}, 15")
        I(f"s_mul_i32 {s(sT3)}, {s(sT2)}, {7*1024}")
        I(f"s_add_u32 {s(sT1)}, {s(sT1)}, {s(sT3)}")
        I(f"s_add_u32 {s(sT1)}, {s(sT1)}, {WS_HH}")
        I(f"s_add_u32 {s(sT3)}, {s(sT1)}, 4096")
        I(f"s_lshl_b32 {s(sT4)}, {s(sP2)}, 7")
        I(f"s_lshl_b32 {s(sT2)}, {s(sT2)}, 2")
        I(f"s_add_u32 {s(sT4)}, {s(sT4)}, {s(sT2)}")
        I(f"s_add_u32 {s(sT4)}, {s(sT4)}, {WS_FE}")
        k0 = math.sqrt(2.0 / math.pi)
        c0 = -2.0 * k0 * LOG2E
        c1 = c0 * 0.044715
        I(f"v_mov_b32 {v(16)}, {f32(c0)}")
        I(f"v_mov_b32 {v(18)}, {f32(c1)}")
        I(f"v_mov_b32 {v(20)}, 1.0")
        for t in range(7):
            g = ACC + 16 * t
            u = g + 8
            T = 24
            for j in range(4):
                I(f"v_pk_mul_f32 {v(T+2*j,2)}, {v(g+2*j,2)}, {v(g+2*j,2)}")
            for j in range(4):
                I(f"v_pk_fma_f32 {v(T+2*j,2)}, {v(T+2*j,2)}, {v(18,2)}, {v(16,2)} op_sel_hi:[1,0,0]")
            for j in range(4):
                I(f"v_pk_mul_f32 {v(T+2*j,2)}, {v(T+2*j,2)}, {v(g+2*j,2)}")
            for j in range(8):
                I(f"v_exp_f32 {v(T+j)}, {v(T+j)}")
            for j in range(4):
                I(f"v_pk_mul_f32 {v(u+2*j,2)}, {v(u+2*j,2)}, {v(g+2*j,2)}")
            for j in range(4):
                I(f"v_pk_add_f32 {v(T+2*j,2)}, {v(T+2*j,2)}, {v(20,2)} op_sel_hi:[1,0]")
            for j in range(8):
                I(f"v_rcp_f32 {v(T+j)}, {v(T+j)}")
            I("s_nop 0")
            for j in range(4):
                I(f"v_pk_mul_f32 {v(u+2*j,2)}, {v(u+2*j,2)}, {v(T+2*j,2)}")
            for j in range(4):
                I(f"v_cvt_pk_bf16_f32 {v(WB+4*t+j)}, {v(u+2*j)}, {v(u+2*j+1)}")

        def st(fl):
            for t in range(7):
                self.vmem(f"buffer_store_dwordx4 {v(WB+4*t,4)}, {v(vL16)}, {s(WS,4)}, {s(sT1 if t < 4 else sT3)} offen offset:{(t%4)*1024} {fl}")
        self.stamp("E epilogue done")
        self.publish(st, sT4, True)
        self.stamp("E published")

    def phaseF(self):
        I = self.I
        ACC = 64; WB = 16
        I(f"s_and_b32 {s(sT1)}, {s(sP0)}, 0x7e")
        I(f"s_lshl_b32 {s(sT1)}, {s(sT1)}, 7")
        I(f"s_lshl_b32 {s(sT2)}, {s(sW)}, 4")
        I(f"s_add_u32 {s(sT1)}, {s(sT1)}, {s(sT2)}")
        I(f"s_add_u32 {s(sT1)}, {s(sT1)}, {WS_FE}")
        I(f"v_and_b32 {v(vT1)}, 1, {v(vL)}")
        I(f"v_lshlrev_b32 {v(vT1)}, 7, {v(vT1)}")
        I(f"v_and_b32 {v(vT2)}, 6, {v(vL)}")
        I(f"v_lshlrev_b32 {v(vT2)}, 1, {v(vT2)}")
        I(f"v_add_u32 {v(vT1)}, {v(vT1)}, {v(vT2)}")
        I(f"s_mul_i32 {s(sT3)}, {s(sW)}, {28*1024}")
        I(f"s_add_u32 {s(sT3)}, {s(sT3)}, {WS_HH}")
        I(f"s_mul_i32 {s(sT2)}, {s(sP0)}, {112*1024}")
        I(f"s_add_u32 {s(sT2)}, {s(sT2)}, {s(sT3)}")
        I(f"s_xor_b32 {s(sT4)}, {s(sP0)}, 1")
        I(f"s_mul_i32 {s(sT4)}, {s(sT4)}, {112*1024}")
        I(f"s_add_u32 {s(sT3)}, {s(sT3)}, {s(sT4)}")
        I(f"s_lshr_b32 s3, {s(sW)}, 1")
        I("s_lshl_b32 s3, s3, 10")
        I(f"s_add_u32 {s(sT4)}, s3, {s(sT6)}")
        I(f"v_add_u32 {v(251)}, {s(sT4)}, {v(vTR)}")
        I(f"v_xor_b32 {v(252)}, 1024, {v(251)}")
        I(f"v_add_u32 {v(253)}, 65536, {v(251)}")
        I(f"v_add_u32 {v(254)}, 65536, {v(252)}")
        I(f"v_add_u32 {v(vT3)}, 0x20000, {v(251)}")
        I(f"v_add_u32 {v(vP3)}, 0x20000, {v(252)}")
        for j in range(4):
            self.lds(f"ds_read_b128 {v(192+4*j,4)}, {v(250)} offset:{3*256 + (j//2)*64 + (j%2)*16}", "gb")
        self.poll(sT1, vT1)
        self.stamp("F start")
        for n in range(28):
            if n % 4 == 0 and n:
                I(f"s_add_u32 {s(sT2)}, {s(sT2)}, 4096")
                I(f"s_add_u32 {s(sT3)}, {s(sT3)}, 4096")
            for t in range(2):
                self.vmem(f"buffer_load_dwordx4 {a(8*n+4*t,4)}, {v(vL16)}, {s(WS,4)}, {s(sT2+t)} offen offset:{(n%4)*1024} sc1", f"h{n}")

        def wread(n):
            ad = self.wd_slot(n)
            seg = ad >> 16
            buf = WB + 8 * (n % 3)
            if n >= 18:
                self.wait(vm=f"wd{n}")
            for c in range(2):
                base = ((251, 252), (253, 254), (vT3, vP3))[seg][c]
                for hf in range(2):
                    self.lds(f"ds_read_b64_tr_b16 {v(buf+4*c+2*hf,2)}, {v(base)} offset:{(ad & 0xffff)+hf*256}", f"w{n}")
        wread(0)
        wread(1)
        for n in range(28):
            buf = WB + 8 * (n % 3)
            self.wait(vm=f"h{n}", lg=f"w{n}")
            for c in range(2):
                for t in range(2):
                    acc = v(ACC + 16 * (2 * c + t), 16)
                    I(f"v_mfma_f32_32x32x16_bf16 {acc}, {v(buf+4*c,4)}, {a(8*n+4*t,4)}, {acc if n else '0'}")
                    if c == 0 and t == 0:
                        if n + 18 < 28:
                            self.wd_dma(n + 18)
                        if n + 2 < 28:
                            wread(n + 2)
        self.stamp("F mfma done")
        I(f"v_add_u32 {v(vT0)}, {s(sT6)}, {v(vL16)}")
        for r in range(3):
            I(f"v_xor_b32 {v(vT1+r)}, {(r+1)*2048}, {v(vT0)}")
        self.nop(8)
        for r in range(3):
            for j in range(4):
                self.lds(f"ds_write_b128 {v(vT0)}, {v(ACC+16*(r+1)+4*j,4)} offset:{(2*r+j//2)*8192+(j%2)*1024}")
        for j in range(8):
            self.unpack(16 + 2 * j, 17 + 2 * j, self.X1 + j)
        self.wait(lg="all")
        I("s_barrier")
        for r in range(3):
            for j in range(4):
                self.lds(f"ds_read_b128 {v(ACC+16*(r+1)+4*j,4)}, {v(vT1+r)} offset:{(2*r+j//2)*8192+(j%2)*1024}", f"r{r}")
        for r in range(3):
            self.wait(lg=f"r{r}")
            for j in range(8):
                I(f"v_pk_add_f32 {v(ACC+2*j,2)}, {v(ACC+2*j,2)}, {v(ACC+16*(r+1)+2*j,2)}")
        for j in range(8):
            I(f"v_cvt_pk_bf16_f32 {v(32+j)}, {v(ACC+2*j)}, {v(ACC+1+2*j)}")
        for j in range(8):
            self.unpack(ACC + 2 * j, ACC + 1 + 2 * j, 32 + j)
        for j in range(8):
            I(f"v_pk_mul_f32 {v(ACC+2*j,2)}, {v(ACC+2*j,2)}, {v(192+2*j,2)}")
        for j in range(8):
            I(f"v_cvt_pk_bf16_f32 {v(32+j)}, {v(ACC+2*j)}, {v(ACC+1+2*j)}")
        for j in range(8):
            self.unpack(ACC + 2 * j, ACC + 1 + 2 * j, 32 + j)
        for j in range(8):
            I(f"v_pk_add_f32 {v(ACC+2*j,2)}, {v(ACC+2*j,2)}, {v(16+2*j,2)}")
        for j in range(8):
            I(f"v_cvt_pk_bf16_f32 {v(32+j)}, {v(ACC+2*j)}, {v(ACC+1+2*j)}")
        self.vmem(f"buffer_store_dwordx4 {v(32,4)}, {v(249)}, {s(OUT,4)}, {s(sP3)} offen")
        self.vmem(f"buffer_store_dwordx4 {v(36,4)}, {v(249)}, {s(OUT,4)}, {s(sP3)} offen offset:32")

    def epilogue(self):
        I = self.I
        lab = self.newlab("L_noep")
        I(f"s_add_u32 s3, s2, {s(sW)}")
        I("s_cmp_lg_u32 s3, 0")
        I(f"s_cbranch_scc1 {lab}")
        if self.opt.stop not in ("A", "B", "C"):
            I(f"buffer_store_dword {v(vTAG)}, off, {s(WS,4)}, 0 offset:{WS_E} sc1")
        self.label(lab)
        if self.opt.stamps:
            I("s_waitcnt vmcnt(0)")
            self.stamp("end")
            I("s_lshl_b32 s3, s2, 2")
            I(f"s_add_u32 s3, s3, {s(sW)}")
            I("s_lshl_b32 s3, s3, 7")
            I(f"s_add_u32 s3, s3, {WS_DBG}")
            for i in range(self.nstamp):
                I(f"v_mov_b32 {v(vT0)}, {s(sSTAMP+2+i)}")
                I(f"buffer_store_dword {v(vT0)}, off, {s(WS,4)}, s3 offset:{4*i}")
            I(f"v_mov_b32 {v(vT0)}, {s(sFAST)}")
            I(f"buffer_store_dword {v(vT0)}, off, {s(WS,4)}, s3 offset:124")

    def build(self):
        self.prologue_all()
        phases = [self.phaseA, self.phaseB, self.phaseC, self.phaseD, self.phaseE, self.phaseF]
        for i, ph in enumerate(phases):
            ph()
            if self.opt.stop == "ABCDEF"[i]:
                break
        self.epilogue()
        self.label("L_end")
        self.I("s_endpgm")
        self.label("L_code_end")
        if self.opt.stop not in ("A", "B"):
            self.fallback()

    def prologue_all(self):
        mark = None
        self.prologue()
        idx = next(i for i, l in enumerate(self.L) if l.strip().startswith(f"s_lshl_b32 {s(sP0)}, s3, 1"))
        tail = self.L[idx:]
        del self.L[idx:]
        self.early_srds()
        self.L += tail


HEADER = """; Fused adaLN-modulated block: x + ga*MHA(LN(x)) then + gb*GEGLU(LN(.)), S=2048 D=512 H=32 Df=1792.
; @launch grid=(256,1,1) block=(256,1,1) lds={lds}
.amdgcn_target "amdgcn-amd-amdhsa--gfx950"
.text
.globl {name}_kernel
.p2align 8
.type {name}_kernel,@function
{name}_kernel:
"""
FOOTER = """
.section .rodata,"a"
.p2align 6
.amdhsa_kernel {name}_kernel
  .amdhsa_next_free_vgpr 512
  .amdhsa_next_free_sgpr 102
  .amdhsa_accum_offset 256
  .amdhsa_group_segment_fixed_size 0
  .amdhsa_kernarg_size 96
  .amdhsa_user_sgpr_count 2
  .amdhsa_user_sgpr_kernarg_segment_ptr 1
  .amdhsa_system_sgpr_workgroup_id_x 1
  .amdhsa_float_denorm_mode_32 3
.end_amdhsa_kernel
"""


def main():
    ap = argparse.ArgumentParser()
    ap.add_argument("-o", default=f"cdna_kernels/{NAME}.s")
    ap.add_argument("--stamps", action="store_true")
    ap.add_argument("--stop", default="")
    ap.add_argument("--slow", action="store_true")
    ap.add_argument("--forcefb", action="store_true")
    ap.add_argument("--codepf", type=int, default=0)
    opt = ap.parse_args()
    g = Gen(opt)
    g.build()
    body = g.text()
    probs = check_hazards(body)
    for p in probs:
        print("HAZARD", p)
    open(opt.o, "w").write(HEADER.format(name=NAME, lds=LDS_BYTES) + body + FOOTER.format(name=NAME))
    print("wrote", opt.o, "lines", len(g.L), "hazards", len(probs))


if __name__ == "__main__":
    main()
```

```python
import sys, math, argparse
from asmlib import Asm, v, a, s, check_hazards

NAME = "adaLN_cond__softmax_full_mha__glu_gated_geglu__prompt"

WS_E = 0x0
WS_XT = 0x1000
WS_FA = 0x2000
WS_FM = 0x10000
WS_FH1 = 0x4000
WS_FB = 0x6000
WS_FC = 0x8000
WS_FS = 0xA000
WS_FH2 = 0xC000
WS_FE = 0xE000
WS_MA = 0x20000
WS_MA2 = 0x28000
WS_MP = 0x30000
WS_ST = 0x80000
WS_H1 = 0x100000
WS_Q = 0x300000
WS_KV = 0x500000
WS_O = 0x900000
WS_H2 = WS_O
WS_HH = 0xD00000
WS_DBG = 0x1400000
WS_SIZE = 0x1500000

WS = 4; X = 8; WQKV = 12; WO = 16; WGU = 20; WD = 28; CC = 32; WMOD = 36; OUT = 40
sG = 44; sM = 45; sW = 46; sTAG = 47; sFAST = 48; sXCC = 49; sCNT = 50; sT0 = 51
KA = 52
sT1 = 52; sT2 = 53; sT3 = 54; sT4 = 55; sT5 = 56; sT6 = 57; sT7 = 58
sMSK = 60
sP0 = 62; sP1 = 63; sP2 = 64; sP3 = 65; sP4 = 66; sP5 = 67
sCMP = 68
sSTAMP = 76

vL = 1; vL16 = 2; vIDX = 3; vTR = 4; vTAG = 5; vT0 = 6; vT1 = 7; vT2 = 8; vT3 = 9
vP0 = 10; vP1 = 11; vP2 = 12; vP3 = 13; vP4 = 14; vP5 = 15

LDS_W = 0
LDS_RED = 98304
LDS_MOD = 162816
PAIR = 29184
SLOT = 14592
LDS_WO = 87552
LDS_OR = 87552
LDS_BYTES = 163840

LOG2E = 1.4426950408889634


def f32(x):
    import struct
    return hex(struct.unpack("<I", struct.pack("<f", x))[0])


class Gen(Asm):
    def __init__(self, opt):
        super().__init__()
        self.opt = opt
        self.nstamp = 0

    def stamp(self, name, lvl=""):
        if not self.opt.stamps:
            return
        if lvl and lvl not in self.opt.fine:
            return
        if not lvl and self.opt.fine and name[0] not in self.opt.fine.upper() and name != "end":
            return
        self.C(f"stamp {self.nstamp}: {name}")
        self.I(f"{'s_memtime' if self.opt.cyc else 's_memrealtime'} {s(sSTAMP,2)}")
        self.I("s_waitcnt lgkmcnt(0)")
        self.lg.clear()
        self.I(f"s_mov_b32 {s(sSTAMP+2+self.nstamp)}, {s(sSTAMP)}")
        self.nstamp += 1
        assert sSTAMP + 2 + self.nstamp <= 100

    def srd(self, d, karg, nbytes):
        self.I(f"s_mov_b32 {s(d)}, {s(KA+2*karg)}")
        self.I(f"s_mov_b32 {s(d+1)}, {s(KA+2*karg+1)}")
        self.I(f"s_mov_b32 {s(d+2)}, {hex(nbytes)}")
        self.I(f"s_mov_b32 {s(d+3)}, 0x00020000")

    def poll(self, soff, voff, tmp=vT0):
        lp, done = self.newlab("L_poll"), self.newlab("L_got")
        self.I(f"s_mov_b32 {s(sCNT)}, 0x100000")
        self.label(lp)
        self.I(f"buffer_load_dword {v(tmp)}, {v(voff)}, {s(WS,4)}, {s(soff)} offen sc1")
        self.I("s_waitcnt vmcnt(0)")
        self.vm.clear()
        self.I(f"v_cmp_ne_u32 vcc, {s(sTAG)}, {v(tmp)}")
        self.I(f"s_cbranch_vccz {done}")
        self.I(f"s_sub_u32 {s(sCNT)}, {s(sCNT)}, 1")
        self.I(f"s_cbranch_scc0 {lp}")
        self.label(done)

    def publish(self, stores, sflag, local):
        def body(fl):
            stores(fl)
            self.I("s_waitcnt vmcnt(0)")
            self.vm.clear()
            self.vmem(f"buffer_store_dword {v(vTAG)}, off, {s(WS,4)}, {s(sflag)} {fl}", "flag")
        if not local:
            body("sc1")
            return
        slow, done = self.newlab("L_slow"), self.newlab("L_pub")
        self.I(f"s_cmp_eq_u32 {s(sFAST)}, 0")
        self.I(f"s_cbranch_scc1 {slow}")
        body("")
        self.I(f"s_branch {done}")
        self.label(slow)
        body("sc1")
        self.label(done)

    def unpack(self, dlo, dhi, src):
        self.I(f"v_lshlrev_b32 {v(dlo)}, 16, {v(src)}")
        self.I(f"v_and_b32 {v(dhi)}, 0xffff0000, {v(src)}")

    def round_bf16(self, r):
        self.I(f"v_cvt_pk_bf16_f32 {v(r)}, {v(r)}, {v(r)}")
        self.I(f"v_and_b32 {v(r)}, 0xffff0000, {v(r)}")

    def dpp_add(self, r, ctl):
        self.I(f"v_add_f32_dpp {v(r)}, {v(r)}, {v(r)} {ctl} row_mask:0xf bank_mask:0xf")

    def dma(self, voff, srd_, m0_expr, so_expr, tag, flags=""):
        self.I(f"s_add_u32 m0, {s(m0_expr[0])}, {m0_expr[1]}")
        self.I(f"s_add_u32 {s(sT0)}, {s(so_expr[0])}, {so_expr[1]}")
        self.vmem(f"buffer_load_dwordx4 {v(voff)}, {s(srd_,4)}, {s(sT0)} offen {flags} lds", tag)

    def prologue(self):
        I = self.I
        I("s_cmp_ge_u32 s2, 256")
        I("s_cbranch_scc1 L_end")
        I(f"s_load_dwordx16 {s(KA,16)}, s[0:1], 0")
        I(f"s_load_dwordx8 {s(KA+16,8)}, s[0:1], 64")
        if self.opt.stamps:
            I(f"{'s_memtime' if self.opt.cyc else 's_memrealtime'} {s(sSTAMP,2)}")
            I("s_memtime s[100:101]")
        I(f"v_and_b32 {v(vL)}, 63, v0")
        I(f"v_lshrrev_b32 {v(vT0)}, 6, v0")
        I(f"v_lshlrev_b32 {v(vL16)}, 4, {v(vL)}")
        I(f"v_readfirstlane_b32 {s(sW)}, {v(vT0)}")
        I(f"s_and_b32 {s(sG)}, s2, 7")
        I(f"s_lshr_b32 {s(sM)}, s2, 3")
        I(f"s_getreg_b32 {s(sXCC)}, hwreg(HW_REG_XCC_ID)")
        I(f"s_and_b32 {s(sXCC)}, {s(sXCC)}, 15")
        I(f"v_lshrrev_b32 {v(vT0)}, 2, {v(vL)}")
        I(f"v_lshlrev_b32 {v(vT0)}, 3, {v(vT0)}")
        I(f"s_lshl_b32 s3, {s(sW)}, 7")
        I(f"v_add_u32 {v(vT0)}, s3, {v(vT0)}")
        I(f"v_lshlrev_b32 {v(vP0)}, 1, {v(vT0)}")
        I(f"v_mul_u32_u24 {v(vP1)}, 6144, {v(vT0)}")
        I(f"v_and_b32 {v(vT1)}, 3, {v(vL)}")
        I(f"v_lshlrev_b32 {v(vT1)}, 4, {v(vT1)}")
        I(f"s_lshl_b32 s3, {s(sM)}, 6")
        I(f"v_add3_u32 {v(vP1)}, {v(vP1)}, {v(vT1)}, s3")
        I(f"v_lshrrev_b32 {v(vT0)}, 3, {v(vL)}")
        I(f"v_lshlrev_b32 {v(vT0)}, 1, {v(vT0)}")
        I("s_lshr_b32 s3, s2, 5")
        I("s_lshl_b32 s3, s3, 2")
        I(f"s_add_u32 s3, s3, {s(sW)}")
        I("s_lshl_b32 s3, s3, 4")
        I(f"v_add_u32 {v(vT0)}, s3, {v(vT0)}")
        I(f"v_lshlrev_b32 {v(vP2)}, 1, {v(vT0)}")
        I(f"v_mul_u32_u24 {v(vP3)}, 6144, {v(vT0)}")
        I(f"v_and_b32 {v(vT2)}, 7, {v(vL)}")
        I(f"v_lshlrev_b32 {v(vT2)}, 4, {v(vT2)}")
        I("s_and_b32 s3, s2, 31")
        I("s_lshl_b32 s3, s3, 7")
        I("s_add_u32 s3, s3, 2048")
        I(f"v_add3_u32 {v(vP3)}, {v(vP3)}, {v(vT2)}, s3")
        I(f"v_lshrrev_b32 {v(vT0)}, 2, {v(vL)}")
        I(f"v_mul_u32_u24 {v(vP4)}, 3072, {v(vT0)}")
        I(f"s_and_b32 s3, {s(sM)}, 15")
        I("s_lshl_b32 s3, s3, 6")
        I(f"v_add3_u32 {v(vP4)}, {v(vP4)}, {v(vT1)}, s3")
        I("s_waitcnt lgkmcnt(0)")
        if self.opt.stamps:
            I(f"s_mov_b32 {s(sSTAMP+2)}, {s(sSTAMP)}")
            self.nstamp = 1
        I(f"s_load_dword {s(sTAG)}, {s(KA+22,2)}, {WS_E}")
        self.srd(CC, 7, 1024)
        self.srd(WMOD, 8, 512 * 3072 * 2)
        self.srd(WS, 11, WS_SIZE)
        self.vmem(f"buffer_load_dwordx4 {v(48,4)}, {v(vP0)}, {s(CC,4)}, 0 offen", "c1")
        for i in range(8):
            if i:
                I(f"s_mov_b32 s3, {i*6144}")
            self.vmem(f"buffer_load_dwordx4 {v(16+4*i,4)}, {v(vP1)}, {s(WMOD,4)}, {'s3' if i else '0'} offen", f"w1_{i}")
            if i == 3:
                self.srd(X, 0, 2048 * 512 * 2)
                self.early_srds()
        I(f"s_lshl_b32 s3, {s(sG)}, 5")
        I(f"s_add_u32 s3, s3, {s(sM)}")
        I("s_lshl_b32 s3, s3, 2")
        I(f"s_add_u32 s3, s3, {s(sW)}")
        I(f"s_lshl_b32 {s(sP0)}, s3, 1")
        I(f"s_lshl_b32 {s(sP1)}, s3, 11")
        self.vmem(f"buffer_load_dwordx4 {v(64,4)}, {v(vL16)}, {s(X,4)}, {s(sP1)} offen", "x0")
        self.vmem(f"buffer_load_dwordx4 {v(68,4)}, {v(vL16)}, {s(X,4)}, {s(sP1)} offen offset:1024", "x1")
        I(f"s_lshr_b32 {s(sT1)}, {s(sP0)}, 5")
        I(f"s_lshl_b32 {s(sT2)}, {s(sT1)}, 15")
        I(f"s_and_b32 {s(sT3)}, {s(sM)}, 3")
        I(f"s_lshl_b32 {s(sT3)}, {s(sT3)}, 7")
        I(f"s_add_u32 {s(sT2)}, {s(sT2)}, {s(sT3)}")
        I(f"s_lshl_b32 {s(sT3)}, {s(sW)}, 13")
        I(f"s_add_u32 {s(sT2)}, {s(sT2)}, {s(sT3)}")
        I(f"s_add_u32 {s(sT2)}, {s(sT2)}, {WS_H1}")
        I(f"v_lshlrev_b32 {v(vT0)}, 9, {v(vL)}")
        I(f"v_add_u32 {v(vT0)}, {s(sT2)}, {v(vT0)}")
        I(f"s_lshl_b32 {s(sT1)}, {s(sT1)}, 7")
        I(f"s_add_u32 {s(sT1)}, {s(sT1)}, {WS_FH1}")
        I(f"s_lshl_b32 {s(sT2)}, {s(sG)}, 5")
        I(f"s_add_u32 {s(sT2)}, {s(sT2)}, {s(sM)}")
        I(f"s_lshl_b32 {s(sT2)}, {s(sT2)}, 7")
        I(f"s_add_u32 {s(sT2)}, {s(sT2)}, {WS_MA}")
        I(f"v_cmp_gt_u32 vcc, 16, {v(vL)}")
        I(f"v_mov_b32 {v(vT1)}, {s(sT1)}")
        I(f"v_mov_b32 {v(vT2)}, {s(sT2)}")
        I(f"v_cndmask_b32 {v(vT0)}, {v(vT1)}, {v(vT0)}, vcc")
        I(f"v_cmp_eq_u32 vcc, 16, {v(vL)}")
        I("s_nop 1")
        I(f"v_cndmask_b32 {v(vT0)}, {v(vT0)}, {v(vT2)}, vcc")
        self.vmem(f"buffer_load_dword {v(254)}, {v(vT0)}, {s(WS,4)}, 0 offen", "touch")
        I("s_lshl_b32 s3, s2, 2")
        I(f"s_add_u32 s3, s3, {s(sW)}")
        I(f"s_mul_i32 {s(sT1)}, s3, {12*128}")
        I(f"s_lshl_b32 {s(sT2)}, s3, 9")
        I(f"v_min_u32 {v(vT0)}, 11, {v(vL)}")
        I(f"v_lshlrev_b32 {v(vT0)}, 7, {v(vT0)}")
        I(f"v_min_u32 {v(vT1)}, 384, {v(vT0)}")
        self.vmem(f"buffer_load_dword {v(253)}, {v(vT0)}, {s(WQKV,4)}, {s(sT1)} offen", "touch")
        self.vmem(f"buffer_load_dword {v(252)}, {v(vT1)}, {s(WO,4)}, {s(sT2)} offen", "touch")

    def early_srds(self):
        I = self.I
        self.srd(WQKV, 1, 512 * 1536 * 2)
        self.srd(WO, 2, 512 * 512 * 2)
        self.srd(WD, 6, 1792 * 512 * 2)
        self.srd(OUT, 9, 2048 * 512 * 2)
        I(f"s_bitcmp1_b32 {s(sW)}, 0")
        I(f"s_cselect_b32 {s(WGU)}, {s(KA+10)}, {s(KA+8)}")
        I(f"s_cselect_b32 {s(WGU+1)}, {s(KA+11)}, {s(KA+9)}")
        I(f"s_mov_b32 {s(WGU+2)}, {hex(512*1792*2)}")
        I(f"s_mov_b32 {s(WGU+3)}, 0x00020000")

    def silu(self, regs_):
        I = self.I
        n = len(regs_)
        t = [72 + i for i in range(n)]
        for r, q in zip(regs_, t):
            I(f"v_mul_f32 {v(q)}, {f32(-LOG2E)}, {v(r)}")
        for q in t:
            I(f"v_exp_f32 {v(q)}, {v(q)}")
        I("s_nop 0")
        for q in t:
            I(f"v_add_f32 {v(q)}, 1.0, {v(q)}")
        for q in t:
            I(f"v_rcp_f32 {v(q)}, {v(q)}")
        I("s_nop 0")
        for r, q in zip(regs_, t):
            I(f"v_mul_f32 {v(r)}, {v(r)}, {v(q)}")
        for i in range(0, n, 2):
            I(f"v_cvt_pk_bf16_f32 {v(t[i])}, {v(regs_[i])}, {v(regs_[i+1])}")
        for i in range(0, n, 2):
            self.unpack(regs_[i], regs_[i + 1], t[i])

    def gemv_rows(self, data, sreg, acc, first):
        I = self.I
        for j in range(4):
            self.unpack(96 + 2 * j, 97 + 2 * j, data + j)
        base = sreg & ~1
        sel = sreg & 1
        for j in range(4):
            if first:
                I(f"v_pk_mul_f32 {v(acc+2*j,2)}, {v(96+2*j,2)}, {v(base,2)} op_sel:[0,{sel}] op_sel_hi:[1,{sel}]")
            else:
                I(f"v_pk_fma_f32 {v(acc+2*j,2)}, {v(96+2*j,2)}, {v(base,2)}, {v(acc+2*j,2)} op_sel:[0,{sel},0] op_sel_hi:[1,{sel},1]")

    def lane_reduce8(self, acc, rors):
        I = self.I
        for r in rors:
            for j in range(8):
                self.dpp_add(acc + j, f"row_ror:{r}")
        I("s_nop 0")
        for j in range(4):
            I(f"v_permlane16_swap_b32 {v(acc+j)}, {v(acc+j+4)}")
        for j in range(4):
            I(f"v_add_f32 {v(acc+j)}, {v(acc+j)}, {v(acc+j+4)}")
        I("s_nop 0")
        for j in range(2):
            I(f"v_permlane32_swap_b32 {v(acc+j)}, {v(acc+j+2)}")
        for j in range(2):
            I(f"v_add_f32 {v(acc+j)}, {v(acc+j)}, {v(acc+j+2)}")

    def wave_sum2(self, r0, r1, t0, t1):
        I = self.I
        for ror in (8, 4, 2, 1):
            I("s_nop 0")
            self.dpp_add(r0, f"row_ror:{ror}")
            self.dpp_add(r1, f"row_ror:{ror}")
        for op in ("v_permlane16_swap_b32", "v_permlane32_swap_b32"):
            I(f"v_mov_b32 {v(t0)}, {v(r0)}")
            I(f"v_mov_b32 {v(t1)}, {v(r1)}")
            I("s_nop 0")
            I(f"{op} {v(r0)}, {v(t0)}")
            I(f"{op} {v(r1)}, {v(t1)}")
            I(f"v_add_f32 {v(r0)}, {v(r0)}, {v(t0)}")
            I(f"v_add_f32 {v(r1)}, {v(r1)}, {v(t1)}")

    def w_dma(self, b, i):
        kb, t = 8 * b + i // 3, i % 3
        self.dma(255, WQKV, (sP5, LDS_W + t * 32768 + kb * 1024), (sP4, kb * 49152 + t * 1024), f"wb{b}")

    def gpoll(self, loads, tags, what):
        I = self.I
        lp, done = self.newlab("L_gp"), self.newlab("L_gg")
        I(f"s_mov_b32 {s(sCNT)}, 0x80000")
        self.label(lp)
        loads()
        I("s_waitcnt vmcnt(0)")
        self.vm.clear()
        t = list(tags)
        I(f"v_xor_b32 {v(vT0)}, {v(vTAG)}, {v(t[0])}")
        rest = t[1:]
        while rest:
            I(f"v_xor_b32 {v(vT1)}, {v(vTAG)}, {v(rest[0])}")
            if len(rest) > 1:
                I(f"v_xor_b32 {v(vT3)}, {v(vTAG)}, {v(rest[1])}")
                I(f"v_or3_b32 {v(vT0)}, {v(vT0)}, {v(vT1)}, {v(vT3)}")
                rest = rest[2:]
            else:
                I(f"v_or_b32 {v(vT0)}, {v(vT0)}, {v(vT1)}")
                rest = []
        I(f"v_cmp_ne_u32 vcc, 0, {v(vT0)}")
        I(f"s_cbranch_vccz {done}")
        I(f"s_sub_u32 {s(sCNT)}, {s(sCNT)}, 1")
        I(f"s_cbranch_scc0 {lp}")
        self.label(done)

    def local_store(self, fn):
        slow, done = self.newlab("L_slow"), self.newlab("L_st")
        self.I(f"s_cmp_eq_u32 {s(sFAST)}, 0")
        self.I(f"s_cbranch_scc1 {slow}")
        n = len(self.vm)
        fn("")
        del self.vm[n:]
        self.I(f"s_branch {done}")
        self.label(slow)
        fn("sc1")
        self.label(done)

    def phaseA(self):
        I = self.I
        self.stamp("A issued", "a")
        I(f"v_mov_b32 {v(255)}, {v(vP4)}")
        I(f"s_mul_i32 {s(sP4)}, {s(sW)}, {2*49152}")
        I(f"s_lshl_b32 {s(sP5)}, {s(sW)}, 11")
        I(f"v_lshrrev_b32 {v(vT0)}, 5, {v(vL)}")
        I(f"v_lshlrev_b32 {v(vT0)}, 3, {v(vT0)}")
        I(f"v_bfe_u32 {v(vT1)}, {v(vL)}, 2, 2")
        I(f"v_add_u32 {v(vP5)}, {v(vT0)}, {v(vT1)}")
        I(f"v_and_b32 {v(vT0)}, 1, {v(vL)}")
        I(f"v_lshlrev_b32 {v(vT0)}, 4, {v(vT0)}")
        I(f"v_and_b32 {v(vT1)}, 2, {v(vL)}")
        I(f"v_lshlrev_b32 {v(vT1)}, 2, {v(vT1)}")
        I(f"v_add_u32 {v(vP4)}, {v(vT0)}, {v(vT1)}")
        I(f"v_bfe_u32 {v(vT2)}, {v(vL)}, 4, 1")
        I(f"v_lshlrev_b32 {v(vT2)}, 5, {v(vT2)}")
        I(f"v_lshlrev_b32 {v(vT0)}, 6, {v(vP5)}")
        I(f"v_add3_u32 {v(vTR)}, {v(vT0)}, {v(vT2)}, {v(vP4)}")
        I(f"v_and_b32 {v(vP0)}, 31, {v(vL)}")
        I(f"v_lshlrev_b32 {v(vP0)}, 2, {v(vP0)}")
        I(f"v_and_b32 {v(vP1)}, 15, {v(vL)}")
        I(f"v_lshlrev_b32 {v(vP1)}, 2, {v(vP1)}")
        I(f"v_lshrrev_b32 {v(vT0)}, 5, {v(vL)}")
        I(f"v_lshlrev_b32 {v(vT0)}, 3, {v(vT0)}")
        I(f"v_and_b32 {v(vT1)}, 16, {v(vL)}")
        I(f"v_add_u32 {v(vT3)}, {v(vT0)}, {v(vT1)}")
        I(f"v_and_b32 {v(vT0)}, 3, {v(vL)}")
        I(f"v_lshlrev_b32 {v(122)}, 3, {v(vT0)}")
        I(f"v_lshlrev_b32 {v(vT0)}, 5, {v(vT0)}")
        I(f"s_lshl_b32 s3, {s(sW)}, 7")
        I(f"s_add_u32 s3, s3, {LDS_RED}")
        I(f"v_add3_u32 {v(120)}, {v(vT0)}, {v(vT3)}, s3")
        I(f"v_and_b32 {v(vT0)}, 7, {v(vL)}")
        I(f"v_lshlrev_b32 {v(vT0)}, 5, {v(vT0)}")
        I(f"s_lshl_b32 s3, {s(sW)}, 8")
        I(f"s_add_u32 s3, s3, {LDS_RED+512}")
        I(f"v_add3_u32 {v(121)}, {v(vT0)}, {v(vT3)}, s3")
        I(f"s_lshl_b32 s3, {s(sW)}, 5")
        I(f"s_add_u32 s3, s3, {LDS_RED}")
        I(f"v_add_u32 {v(123)}, s3, {v(122)}")
        I(f"s_lshl_b32 s3, {s(sW)}, 6")
        I(f"s_add_u32 s3, s3, {LDS_RED+512}")
        I(f"v_add_u32 {v(124)}, s3, {v(vP1)}")
        I(f"v_lshlrev_b32 {v(125)}, 5, {v(vL)}")
        I("s_waitcnt lgkmcnt(0)")
        I(f"s_add_u32 {s(sTAG)}, {s(sTAG)}, 32")
        I(f"v_mov_b32 {v(vTAG)}, {s(sTAG)}")
        I(f"s_add_u32 {s(sXCC)}, {s(sXCC)}, {s(sTAG)}")
        I(f"s_add_u32 {s(sXCC)}, {s(sXCC)}, 1")
        I(f"v_mov_b32 {v(126)}, {s(sXCC)}")
        I(f"s_lshl_b32 {s(sT2)}, {s(sG)}, 12")
        I(f"s_add_u32 {s(sT2)}, {s(sT2)}, {WS_MA}")
        I(f"s_lshl_b32 s3, {s(sM)}, 2")
        I(f"s_add_u32 s3, s3, {s(sW)}")
        I("s_lshl_b32 s3, s3, 5")
        I(f"s_add_u32 {s(sT3)}, {s(sT2)}, s3")
        self.wait(vm="c1")
        self.stamp("A c1", "a")
        for j in range(4):
            self.unpack(80 + 2 * j, 81 + 2 * j, 48 + j)
        self.silu(list(range(80, 88)))
        self.stamp("A silu", "a")
        I("s_mov_b32 s3, 6144")
        for i in range(8):
            self.wait(vm=f"w1_{i}")
            if i in (0, 7): self.stamp(f"A w1_{i}", "a")
            if i == 0:
                self.vmem(f"buffer_load_dword {v(60)}, {v(vP2)}, {s(CC,4)}, 0 offen", "c2")
                self.vmem(f"buffer_load_dwordx4 {v(52,4)}, {v(vP3)}, {s(WMOD,4)}, 0 offen", "w2_0")
            if i == 1:
                self.vmem(f"buffer_load_dwordx4 {v(56,4)}, {v(vP3)}, {s(WMOD,4)}, s3 offen", "w2_1")
            if i >= 2:
                self.w_dma(0, i - 2)
            self.gemv_rows(16 + 4 * i, 80 + i, 104, i == 0)
        if self.opt.codepf:
            I(f"s_getpc_b64 {s(sCMP,2)}")
            self.label("L_pc")
            I(f"s_lshl_b32 s3, {s(sM)}, 2")
            I(f"s_add_u32 s3, s3, {s(sW)}")
            I(f"s_mul_i32 s3, s3, {self.opt.codepf}")
            I(f"v_lshlrev_b32 {v(vT1)}, 7, {v(vL)}")
            I(f"v_min_u32 {v(vT1)}, {self.opt.codepf-128}, {v(vT1)}")
            I(f"v_add_u32 {v(vT1)}, s3, {v(vT1)}")
            I(f"v_min_u32 {v(vT1)}, L_code_end-L_pc-4, {v(vT1)}")
            self.vmem(f"global_load_dword {v(62)}, {v(vT1)}, {s(sCMP,2)}", "cpf")
        I("s_nop 0")
        self.lane_reduce8(104, (8, 4))
        self.lds(f"ds_write_b64 {v(120)}, {v(104,2)}")
        self.wait(lg="all")
        I("s_barrier")
        self.stamp("A gemv done")
        for i in range(4):
            self.lds(f"ds_read_b64 {v(104+2*i,2)}, {v(123)} offset:{i*128}")
        I(f"s_cmp_ge_u32 {s(sM)}, 16")
        I(f"s_cselect_b32 s3, 1.0, 0")
        self.wait(lg="all")
        I(f"v_pk_add_f32 {v(104,2)}, {v(104,2)}, {v(106,2)}")
        I(f"v_pk_add_f32 {v(108,2)}, {v(108,2)}, {v(110,2)}")
        I(f"v_pk_add_f32 {v(104,2)}, {v(104,2)}, {v(108,2)}")
        I(f"v_cvt_pk_bf16_f32 {v(106)}, {v(104)}, {v(105)}")
        self.unpack(104, 105, 106)
        I(f"v_add_f32 {v(104)}, s3, {v(104)}")
        I(f"v_add_f32 {v(105)}, s3, {v(105)}")
        I(f"v_cvt_pk_bf16_f32 {v(106)}, {v(104)}, {v(105)}")
        if self.opt.slow:
            I(f"v_add_u32 {v(107)}, 1, {v(126)}")
        else:
            I(f"v_mov_b32 {v(107)}, {v(126)}")
        self.vmem(f"buffer_store_dwordx2 {v(106,2)}, {v(122)}, {s(WS,4)}, {s(sT3)} offen")
        I(f"s_add_u32 {s(sT6)}, {s(sT3)}, {WS_MA2-WS_MA}")
        self.stamp("A pub done", "a")
        self.wait(vm="w2_1")
        self.unpack(88, 89, 60)
        self.silu([88, 89])
        for i in range(2):
            self.gemv_rows(52 + 4 * i, 88 + i, 112, i == 0)
        I("s_nop 0")
        self.lane_reduce8(112, (8,))
        self.lds(f"ds_write_b64 {v(121)}, {v(112,2)}")
        for r in range(2):
            for j in range(4):
                self.unpack(16 + 8 * r + 2 * j, 17 + 8 * r + 2 * j, 64 + 4 * r + j)
        for r in range(2):
            b = 16 + 8 * r
            I(f"v_pk_add_f32 {v(32+4*r,2)}, {v(b,2)}, {v(b+2,2)}")
            I(f"v_pk_add_f32 {v(34+4*r,2)}, {v(b+4,2)}, {v(b+6,2)}")
            I(f"v_pk_add_f32 {v(32+4*r,2)}, {v(32+4*r,2)}, {v(34+4*r,2)}")
            I(f"v_add_f32 {v(40+2*r)}, {v(32+4*r)}, {v(33+4*r)}")
        self.wave_sum2(40, 42, 46, 47)
        for r in range(2):
            I(f"v_mul_f32 {v(40+2*r)}, {f32(1/512)}, {v(40+2*r)}")
        for r in range(2):
            b = 16 + 8 * r
            for j in range(4):
                I(f"v_pk_add_f32 {v(32+2*j,2)}, {v(b+2*j,2)}, {v(40+2*r,2)} op_sel_hi:[1,0] neg_lo:[0,1] neg_hi:[0,1]")
            I(f"v_pk_mul_f32 {v(48,2)}, {v(32,2)}, {v(32,2)}")
            for j in range(1, 4):
                I(f"v_pk_fma_f32 {v(48,2)}, {v(32+2*j,2)}, {v(32+2*j,2)}, {v(48,2)}")
            I(f"v_add_f32 {v(44+2*r)}, {v(48)}, {v(49)}")
        self.wave_sum2(44, 46, 48, 49)
        for r in range(2):
            self.ln_scalars(40 + 2 * r, 44 + 2 * r, True)
        for r in range(2):
            b = 16 + 8 * r
            for j in range(4):
                I(f"v_pk_add_f32 {v(b+2*j,2)}, {v(b+2*j,2)}, {v(40+2*r,2)} op_sel_hi:[1,0] neg_lo:[0,1] neg_hi:[0,1]")
            for j in range(4):
                I(f"v_pk_mul_f32 {v(b+2*j,2)}, {v(b+2*j,2)}, {v(44+2*r,2)} op_sel_hi:[1,0]")
        I(f"v_lshlrev_b32 {v(vT2)}, 9, {v(vL)}")
        I(f"s_lshr_b32 {s(sT1)}, {s(sP0)}, 5")
        I(f"s_lshl_b32 {s(sT3)}, {s(sT1)}, 15")
        I(f"s_and_b32 {s(sT5)}, {s(sP0)}, 31")
        I(f"s_lshl_b32 {s(sT4)}, {s(sT5)}, 4")
        I(f"s_add_u32 {s(sT3)}, {s(sT3)}, {s(sT4)}")
        I(f"s_add_u32 {s(sT3)}, {s(sT3)}, {WS_H1}")
        I(f"s_lshl_b32 {s(sT4)}, {s(sT1)}, 7")
        I(f"s_lshl_b32 {s(sT5)}, {s(sT5)}, 1")
        I(f"s_add_u32 {s(sT4)}, {s(sT4)}, {s(sT5)}")
        I(f"s_add_u32 {s(sT4)}, {s(sT4)}, {WS_FH1}")
        self.wait(lg="all")
        I("s_barrier")
        self.stamp("A stats done", "a")

        offs = (0, 16, 2048, 2064)
        lp, slow, slp, done = self.newlab("L_ma"), self.newlab("L_maslow"), self.newlab("L_maslp"), self.newlab("L_madone")
        I(f"s_mov_b32 {s(sCNT)}, 48")
        I(f"s_mov_b32 {s(sFAST)}, 1")
        self.label(lp)
        for i, off in enumerate(offs):
            I(f"buffer_load_dwordx4 {v(32+4*i,4)}, {v(125)}, {s(WS,4)}, {s(sT2)} offen offset:{off} sc1")
        I("s_waitcnt vmcnt(0)")
        self.vm.clear()
        for i in range(8):
            I(f"v_xor_b32 {v(33+2*i)}, {v(126)}, {v(33+2*i)}")
        I(f"v_or3_b32 {v(vT0)}, {v(33)}, {v(35)}, {v(37)}")
        I(f"v_or3_b32 {v(vT1)}, {v(39)}, {v(41)}, {v(43)}")
        I(f"v_or3_b32 {v(vT0)}, {v(vT0)}, {v(45)}, {v(47)}")
        I(f"v_or_b32 {v(vT0)}, {v(vT0)}, {v(vT1)}")
        I(f"v_cmp_ne_u32 vcc, 0, {v(vT0)}")
        I(f"s_cbranch_vccz {done}")
        I(f"s_sub_u32 {s(sCNT)}, {s(sCNT)}, 1")
        I(f"s_cbranch_scc0 {lp}")
        I(f"v_mov_b32 {v(107)}, {v(vTAG)}")
        I(f"buffer_store_dwordx2 {v(106,2)}, {v(122)}, {s(WS,4)}, {s(sT6)} offen sc1")
        I(f"s_add_u32 {s(sT6)}, {s(sT2)}, {WS_MA2-WS_MA}")
        I(f"s_mov_b32 {s(sCNT)}, 0x80000")
        self.label(slp)
        for i, off in enumerate(offs):
            I(f"buffer_load_dwordx4 {v(32+4*i,4)}, {v(125)}, {s(WS,4)}, {s(sT2)} offen offset:{off} sc1")
            I(f"buffer_load_dwordx4 {v(48+4*i,4)}, {v(125)}, {s(WS,4)}, {s(sT6)} offen offset:{off} sc1")
        I("s_waitcnt vmcnt(0)")
        I(f"s_mov_b64 {s(sCMP,2)}, 0")
        I(f"s_mov_b64 {s(sCMP+2,2)}, 0")
        for i in range(8):
            I(f"v_cmp_ne_u32 vcc, {v(126)}, {v(33+2*i)}")
            I(f"v_cmp_ne_u32 {s(sCMP+4,2)}, {v(vTAG)}, {v(49+2*i)}")
            I(f"s_or_b64 {s(sCMP+2,2)}, {s(sCMP+2,2)}, vcc")
            I(f"v_cndmask_b32 {v(32+2*i)}, {v(32+2*i)}, {v(48+2*i)}, vcc")
            I(f"s_and_b64 {s(sCMP+4,2)}, {s(sCMP+4,2)}, vcc")
            I(f"s_or_b64 {s(sCMP,2)}, {s(sCMP,2)}, {s(sCMP+4,2)}")
        I(f"s_cmp_eq_u64 {s(sCMP+2,2)}, 0")
        I(f"s_cselect_b32 {s(sFAST)}, 1, 0")
        I(f"s_cmp_eq_u64 {s(sCMP,2)}, 0")
        I(f"s_cbranch_scc1 {done}")
        I(f"s_sub_u32 {s(sCNT)}, {s(sCNT)}, 1")
        I(f"s_cbranch_scc0 {slp}")
        self.label(done)
        self.stamp("A mod ready")
        for j in range(8):
            self.unpack(48 + 2 * j, 49 + 2 * j, 32 + 2 * j)
        for r in range(2):
            b = 16 + 8 * r
            for j in range(4):
                I(f"v_pk_fma_f32 {v(b+2*j,2)}, {v(b+2*j,2)}, {v(56+2*j,2)}, {v(48+2*j,2)}")
            for j in range(4):
                I(f"v_cvt_pk_bf16_f32 {v(32+4*r+j)}, {v(b+2*j)}, {v(b+2*j+1)}")

        def st(fl):
            self.vmem(f"buffer_store_dwordx4 {v(32,4)}, {v(vT2)}, {s(WS,4)}, {s(sT3)} offen {fl}")
            self.vmem(f"buffer_store_dwordx4 {v(36,4)}, {v(vT2)}, {s(WS,4)}, {s(sT3)} offen offset:16 {fl}")
        for i in range(4):
            self.lds(f"ds_read_b32 {v(104+i)}, {v(124)} offset:{i*256}")
        self.publish(st, sT4, True)
        self.stamp("A h1 published")
        I(f"s_lshr_b32 {s(sT3)}, s2, 5")
        I(f"s_and_b32 {s(sT4)}, s2, 31")
        I(f"s_lshl_b32 {s(sT1)}, {s(sT3)}, 13")
        I(f"s_lshl_b32 {s(sT2)}, {s(sT4)}, 8")
        I(f"s_add_u32 {s(sT1)}, {s(sT1)}, {s(sT2)}")
        I(f"s_lshl_b32 {s(sT2)}, {s(sW)}, 6")
        I(f"s_add_u32 {s(sT1)}, {s(sT1)}, {s(sT2)}")
        I(f"s_add_u32 {s(sT1)}, {s(sT1)}, {WS_MP}")
        I(f"s_and_b32 {s(sT2)}, {s(sT4)}, 7")
        I(f"s_lshl_b32 {s(sT2)}, {s(sT2)}, 9")
        I(f"s_and_b32 {s(sT4)}, {s(sT4)}, 24")
        I(f"s_add_u32 {s(sT4)}, {s(sT4)}, {s(sT3)}")
        I(f"s_lshl_b32 {s(sT4)}, {s(sT4)}, 2")
        I(f"s_add_u32 {s(sT4)}, {s(sT4)}, {s(sW)}")
        I(f"s_lshl_b32 {s(sT4)}, {s(sT4)}, 2")
        I(f"s_add_u32 {s(sT2)}, {s(sT2)}, {s(sT4)}")
        I(f"s_add_u32 {s(sP3)}, {s(sT2)}, {WS_FM}")
        self.wait(lg="all")
        I(f"v_add_f32 {v(104)}, {v(104)}, {v(105)}")
        I(f"v_add_f32 {v(106)}, {v(106)}, {v(107)}")
        I(f"v_add_f32 {v(104)}, {v(104)}, {v(106)}")
        self.vmem(f"buffer_store_dword {v(104)}, {v(vP1)}, {s(WS,4)}, {s(sT1)} offen sc1", "mp")
        for i in range(6):
            self.w_dma(1, i)

    def ln_scalars(self, mean, var, centered):
        I = self.I
        if centered:
            I(f"v_mul_f32 {v(var)}, {f32(1/512)}, {v(var)}")
        self.round_bf16(mean)
        self.round_bf16(var)
        I(f"v_add_f32 {v(var)}, {f32(1e-5)}, {v(var)}")
        self.round_bf16(var)
        I(f"v_sqrt_f32 {v(var)}, {v(var)}")
        I("s_nop 0")
        self.round_bf16(var)
        I(f"v_rcp_f32 {v(var)}, {v(var)}")
        I("s_nop 0")

    def phaseB(self):
        I = self.I
        I(f"s_lshr_b32 {s(sT1)}, {s(sM)}, 4")
        I(f"s_lshl_b32 {s(sT2)}, {s(sG)}, 1")
        I(f"s_add_u32 {s(sT1)}, {s(sT1)}, {s(sT2)}")
        I(f"s_lshl_b32 {s(sT1)}, {s(sT1)}, 2")
        I(f"s_add_u32 {s(sP2)}, {s(sT1)}, {s(sW)}")
        I(f"s_lshl_b32 {s(sT1)}, {s(sP2)}, 7")
        I(f"s_add_u32 {s(sT1)}, {s(sT1)}, {WS_FH1}")
        I(f"s_lshl_b32 {s(sT2)}, {s(sP2)}, 15")
        I(f"s_add_u32 {s(sT2)}, {s(sT2)}, {WS_H1}")
        I(f"v_add_u32 {v(vP2)}, 0x10000, {v(vTR)}")
        self.poll(sT1, vP1)
        self.stamp("B h1 flags", "b")
        PD = 8

        def hload(ks):
            if ks % 4 == 0 and ks:
                I(f"s_add_u32 {s(sT2)}, {s(sT2)}, 4096")
            self.vmem(f"buffer_load_dwordx4 {a(4*ks,4)}, {v(vL16)}, {s(WS,4)}, {s(sT2)} offen offset:{(ks%4)*1024} sc1", f"h{ks}")
        for ks in range(PD):
            hload(ks)
        I("s_barrier")
        self.stamp("B start")

        def wread(ks, t):
            buf = 16 + 12 * (ks % 3)
            base, off = (vTR, t * 32768) if t < 2 else (vP2, 0)
            for hf in range(2):
                self.lds(f"ds_read_b64_tr_b16 {v(buf+4*t+2*hf,2)}, {v(base)} offset:{LDS_W+off+ks*1024+hf*256}", f"w{ks}")
        for ks in range(2):
            for t in range(3):
                wread(ks, t)
        for ks in range(32):
            buf = 16 + 12 * (ks % 3)
            if ks % 4 == 0 and ks:
                self.stamp(f"B ks{ks}", "g")
            if ks in (14, 22):
                self.wait(vm=f"wb{2 + (ks-14)//8}")
                I("s_barrier")
            self.wait(vm=f"h{ks}", lg=f"w{ks}")
            for t in range(3):
                acc = v(64 + 16 * t, 16)
                c = acc if ks else "0"
                if t < 2:
                    I(f"v_mfma_f32_32x32x16_bf16 {acc}, {v(buf+4*t,4)}, {a(4*ks,4)}, {c}")
                else:
                    I(f"v_mfma_f32_32x32x16_bf16 {acc}, {a(4*ks,4)}, {v(buf+4*t,4)}, {c}")
                if ks + 2 < 32:
                    wread(ks + 2, t)
                if t == 0 and ks + PD < 32:
                    hload(ks + PD)
                if t == 1 and ks < 12:
                    self.w_dma(2 + ks // 6, ks % 6)
                if t == 1 and ks == 12:
                    self.vmem(f"buffer_store_dword {v(vTAG)}, off, {s(WS,4)}, {s(sP3)} sc1", "fm")
        I("s_barrier")
        I(f"s_and_b32 {s(sT1)}, {s(sM)}, 15")
        I(f"s_lshl_b32 {s(sT2)}, {s(sT1)}, 17")
        I(f"s_lshl_b32 {s(sT3)}, {s(sP2)}, 10")
        I(f"s_add_u32 {s(sT2)}, {s(sT2)}, {s(sT3)}")
        I(f"s_add_u32 {s(sT3)}, {s(sT2)}, {WS_Q}")
        I(f"s_add_u32 {s(sT4)}, {s(sT3)}, 65536")
        I(f"s_lshl_b32 {s(sT2)}, {s(sT2)}, 1")
        I(f"s_add_u32 {s(sT5)}, {s(sT2)}, {WS_KV}")
        I(f"s_add_u32 {s(sT6)}, {s(sT5)}, 131072")
        I(f"s_lshl_b32 {s(sT1)}, {s(sT1)}, 8")
        I(f"s_lshl_b32 {s(sT7)}, {s(sP2)}, 2")
        I(f"s_add_u32 {s(sT7)}, {s(sT7)}, {s(sT1)}")
        I(f"s_add_u32 {s(sT7)}, {s(sT7)}, {WS_FB}")
        I(f"v_and_b32 {v(vT0)}, 0x33, {v(vL)}")
        I(f"v_and_b32 {v(vT1)}, 4, {v(vL)}")
        I(f"v_lshlrev_b32 {v(vT1)}, 1, {v(vT1)}")
        I(f"v_and_b32 {v(vT2)}, 8, {v(vL)}")
        I(f"v_lshrrev_b32 {v(vT2)}, 1, {v(vT2)}")
        I(f"v_or3_b32 {v(vT0)}, {v(vT0)}, {v(vT1)}, {v(vT2)}")
        I(f"v_lshlrev_b32 {v(vT0)}, 4, {v(vT0)}")
        I(f"v_lshrrev_b32 {v(vT1)}, 5, {v(vL)}")
        I(f"v_lshlrev_b32 {v(vT1)}, 8, {v(vT1)}")
        I(f"v_lshlrev_b32 {v(vT2)}, 2, {v(vP1)}")
        I(f"v_add_u32 {v(vP2)}, {v(vT1)}, {v(vT2)}")
        I(f"v_bfe_u32 {v(vT1)}, {v(vL)}, 4, 1")
        I(f"v_lshlrev_b32 {v(vT1)}, 17, {v(vT1)}")
        I(f"v_add_u32 {v(vT1)}, {v(vT1)}, {v(vP2)}")
        I(f"s_mov_b32 s3, {f32(0.25*LOG2E)}")
        for j in range(16):
            I(f"v_mul_f32 {v(64+j)}, s3, {v(64+j)}")
        for j in range(24):
            I(f"v_cvt_pk_bf16_f32 {v(16+j)}, {v(64+2*j)}, {v(65+2*j)}")

        def st(fl):
            self.vmem(f"buffer_store_dwordx4 {v(24,4)}, {v(vT0)}, {s(WS,4)}, {s(sT5)} offen {fl}")
            self.vmem(f"buffer_store_dwordx4 {v(28,4)}, {v(vT0)}, {s(WS,4)}, {s(sT6)} offen {fl}")
            self.vmem(f"buffer_store_dwordx4 {v(32,4)}, {v(vT1)}, {s(WS,4)}, {s(sT5)} offen offset:1024 {fl}")
            self.vmem(f"buffer_store_dwordx4 {v(36,4)}, {v(vT1)}, {s(WS,4)}, {s(sT5)} offen offset:1536 {fl}")
            self.vmem(f"buffer_store_dwordx4 {v(16,4)}, {v(vL16)}, {s(WS,4)}, {s(sT3)} offen {fl}")
            self.vmem(f"buffer_store_dwordx4 {v(20,4)}, {v(vL16)}, {s(WS,4)}, {s(sT4)} offen {fl}")
        self.stamp("B mfma done")
        self.publish(st, sT7, False)
        self.stamp("B published")

    S0 = 16; O0 = 64; KV0 = 192; NR = 4; Q0 = 128; EP0 = 240

    def e_dma_setup(self):
        I = self.I
        for n in range(448):
            assert (n * 4682) >> 16 == n // 14
        I(f"s_and_b32 s3, {s(sM)}, 15")
        I("s_mul_i32 s3, s3, 224")
        for i in range(7):
            r = self.EP0 + i
            I(f"v_add_u32 {v(vT0)}, {64*i}, {v(vL)}")
            I(f"v_mul_u32_u24 {v(vT1)}, 4682, {v(vT0)}")
            I(f"v_lshrrev_b32 {v(vT1)}, 16, {v(vT1)}")
            I(f"v_mul_u32_u24 {v(vT2)}, {3584-224}, {v(vT1)}")
            I(f"v_lshlrev_b32 {v(vT0)}, 4, {v(vT0)}")
            I(f"v_add3_u32 {v(r)}, {v(vT0)}, {v(vT2)}, s3")
        I(f"s_lshr_b32 s3, {s(sW)}, 1")
        I(f"s_mul_i32 {s(sP4)}, s3, {SLOT}")
        I(f"s_mul_i32 {s(sP5)}, s3, {32*3584}")
        I(f"s_and_b32 s3, {s(sW)}, 1")
        I("s_mul_i32 s3, s3, 7296")
        I(f"s_add_u32 {s(sP4)}, {s(sP4)}, s3")

    def e_dma(self, p, i):
        self.dma(self.EP0 + i, WGU, (sP4, (p % 5) * PAIR + i * 1024), (sP5, p * 64 * 3584), f"ep{p}")

    def phaseC(self):
        I = self.I
        S0, O0, KV0, NR, Q0 = self.S0, self.O0, self.KV0, self.NR, self.Q0
        I(f"s_and_b32 {s(sT1)}, {s(sM)}, 7")
        I(f"s_lshl_b32 {s(sT2)}, {s(sT1)}, 9")
        I(f"s_lshl_b32 {s(sT3)}, {s(sW)}, 7")
        I(f"s_add_u32 {s(sT2)}, {s(sT2)}, {s(sT3)}")
        I(f"s_add_u32 {s(sT2)}, {s(sT2)}, {WS_FM}")
        I(f"s_lshl_b32 {s(sT1)}, {s(sT1)}, 8")
        I(f"s_lshl_b32 {s(sT3)}, {s(sW)}, 11")
        I(f"s_add_u32 {s(sT3)}, {s(sT3)}, {s(sT1)}")
        I(f"s_add_u32 {s(sT3)}, {s(sT3)}, {WS_MP}")
        I(f"v_lshlrev_b32 {v(vP3)}, 2, {v(vL)}")
        for r in range(128):
            I(f"v_mov_b32 {v(O0+r)}, 0")
        I(f"v_and_b32 {v(vT0)}, 27, {v(vL)}")
        I(f"v_cmp_eq_u32 vcc, {16 if not self.opt.allones else 99}, {v(vT0)}")
        I(f"v_mov_b32 {v(vT1)}, 0x3f803f80")
        I("s_nop 0")
        I(f"v_cndmask_b32 {v(vT0)}, {0 if not self.opt.allones else v(vT1)}, {v(vT1)}, vcc")
        for j in range(NR):
            for r in range(8):
                I(f"v_mov_b32 {v(KV0+12*j+4+r)}, {v(vT0)}")
        I(f"v_mov_b32 {v(vIDX)}, 0xdddddddd")
        I(f"s_mov_b32 {s(sMSK)}, 0x0000ffff")
        I(f"s_mov_b32 {s(sMSK+1)}, 0x0000ffff")
        self.e_dma_setup()
        self.poll(sT2, vP0)
        for k in range(8):
            self.vmem(f"buffer_load_dword {v(16+k)}, {v(vP3)}, {s(WS,4)}, {s(sT3)} offen sc1", "mp")
            if k < 7:
                I(f"s_add_u32 {s(sT3)}, {s(sT3)}, 8192")
        I(f"s_and_b32 {s(sT1)}, {s(sM)}, 15")
        I(f"s_lshl_b32 {s(sT2)}, {s(sT1)}, 1")
        I(f"s_lshr_b32 {s(sT4)}, {s(sM)}, 4")
        I(f"s_add_u32 {s(sP0)}, {s(sT2)}, {s(sT4)}")
        I(f"s_lshl_b32 {s(sT1)}, {s(sT1)}, 8")
        I(f"s_add_u32 {s(sT1)}, {s(sT1)}, {WS_FB}")
        I(f"s_lshl_b32 {s(sT2)}, {s(sP0)}, 16")
        I(f"s_lshl_b32 {s(sT4)}, {s(sG)}, 13")
        I(f"s_add_u32 {s(sT4)}, {s(sT4)}, {s(sT2)}")
        I(f"s_add_u32 {s(sT4)}, {s(sT4)}, {WS_Q}")
        I(f"s_lshl_b32 {s(sT2)}, {s(sT2)}, 1")
        I(f"s_add_u32 {s(sP3)}, {s(sT2)}, {WS_KV}")
        I(f"s_lshl_b32 {s(sT5)}, {s(sW)}, 11")
        I(f"s_add_u32 {s(sP1)}, {s(sP3)}, {s(sT5)}")
        I(f"s_cmp_eq_u32 {s(sW)}, 2")
        I(f"s_cselect_b32 {s(sT6)}, 1.0, 0")
        I(f"s_lshl_b32 {s(sT5)}, {s(sW)}, 8")
        I(f"s_add_u32 {s(sT5)}, {s(sT5)}, {LDS_MOD}")
        I(f"v_add_u32 {v(vT1)}, {s(sT5)}, {v(vP3)}")
        self.wait(vm="mp")
        I(f"v_pk_add_f32 {v(16,2)}, {v(16,2)}, {v(18,2)}")
        I(f"v_pk_add_f32 {v(20,2)}, {v(20,2)}, {v(22,2)}")
        I(f"v_pk_add_f32 {v(16,2)}, {v(16,2)}, {v(20,2)}")
        I(f"v_add_f32 {v(16)}, {v(16)}, {v(17)}")
        self.round_bf16(16)
        I(f"v_add_f32 {v(16)}, {s(sT6)}, {v(16)}")
        self.round_bf16(16)
        self.lds(f"ds_write_b32 {v(vT1)}, {v(16)}")
        I(f"v_lshrrev_b32 {v(vT0)}, 2, {v(vL)}")
        I(f"v_lshlrev_b32 {v(vT0)}, 10, {v(vT0)}")
        I(f"v_and_b32 {v(vT1)}, 3, {v(vL)}")
        I(f"v_lshlrev_b32 {v(vT1)}, 4, {v(vT1)}")
        I(f"s_and_b32 s3, {s(sM)}, 7")
        I("s_lshl_b32 s3, s3, 7")
        I(f"v_add3_u32 {v(247)}, {v(vT0)}, {v(vT1)}, s3")
        I(f"s_lshl_b32 {s(sT5)}, {s(sW)}, 14")
        I(f"s_add_u32 {s(sT5)}, {s(sT5)}, {LDS_WO}")
        I(f"s_lshl_b32 {s(sT6)}, {s(sW)}, 17")
        I(f"s_lshr_b32 s3, {s(sW)}, 1")
        I(f"s_mul_i32 s3, s3, {32768+1024}")
        I(f"s_add_u32 s3, s3, {LDS_WO}")
        I(f"v_add_u32 {v(248)}, s3, {v(vTR)}")
        I(f"s_bitcmp1_b32 {s(sW)}, 1")
        I(f"s_cselect_b32 s3, -1, 1")
        I(f"s_lshl_b32 s3, s3, 10")
        I(f"v_add_u32 {v(vT3)}, s3, {v(248)}")
        I(f"s_mul_i32 s3, {s(sW)}, 13824")
        I(f"s_add_u32 s3, s3, {LDS_OR}")
        I(f"v_add_u32 {v(249)}, s3, {v(vL16)}")
        I(f"v_add_u32 {v(250)}, s3, {v(vP3)}")
        for r in range(3):
            I(f"s_add_u32 s3, {s(sW)}, {r+1}")
            I("s_and_b32 s3, s3, 3")
            I("s_mul_i32 s3, s3, 13824")
            I(f"s_add_u32 s3, s3, {LDS_OR + r*4608}")
            I(f"v_add_u32 {v(251+r)}, s3, {v(vL16)}")
        I(f"v_sub_u32 {v(254)}, {v(vP3)}, {v(vL16)}")
        I(f"v_lshlrev_b32 {v(vT2)}, 7, {v(vL)}")
        I(f"s_lshl_b32 s3, s2, 1")
        I(f"s_lshr_b32 {s(sT2)}, {s(sW)}, 1")
        I(f"s_add_u32 s3, s3, {s(sT2)}")
        I(f"s_mul_i32 s3, s3, {11*128}")
        I(f"s_add_u32 s3, s3, {320*3584}")
        I(f"v_min_u32 {v(vT0)}, {10*128}, {v(vT2)}")
        I(f"v_add_u32 {v(vT0)}, s3, {v(vT0)}")
        I(f"v_accvgpr_write_b32 {a(160)}, {v(vT0)}")
        I(f"s_lshl_b32 s3, s2, 2")
        I(f"s_add_u32 s3, s3, {s(sW)}")
        I(f"s_mul_i32 s3, s3, {14*128}")
        I(f"v_min_u32 {v(vT0)}, {13*128}, {v(vT2)}")
        I(f"v_add_u32 {v(vT0)}, s3, {v(vT0)}")
        I(f"v_accvgpr_write_b32 {a(161)}, {v(vT0)}")
        I(f"s_lshl_b32 s3, {s(sM)}, 1")
        I(f"s_add_u32 s3, s3, {s(sT2)}")
        I(f"s_mul_i32 s3, s3, {56*128}")
        I(f"s_add_u32 s3, s3, {192*3584}")
        I(f"v_min_u32 {v(vT0)}, {27*128}, {v(vT2)}")
        I(f"v_add_u32 {v(vT0)}, s3, {v(vT0)}")
        I(f"v_accvgpr_write_b32 {a(162)}, {v(vT0)}")
        I(f"s_mul_i32 {s(sT2)}, {s(sP2)}, {112*1024}")
        I(f"s_and_b32 s3, {s(sM)}, 15")
        I(f"s_mul_i32 s3, s3, {7*1024}")
        I(f"s_add_u32 s3, s3, {s(sT2)}")
        I(f"s_add_u32 s3, s3, {WS_HH}")
        I(f"v_min_u32 {v(vT0)}, {27*128}, {v(vT2)}")
        I(f"v_add_u32 {v(vT0)}, s3, {v(vT0)}")
        I(f"v_accvgpr_write_b32 {a(163)}, {v(vT0)}")
        I(f"s_lshl_b32 {s(sT2)}, {s(sG)}, 2")
        I(f"s_add_u32 {s(sT2)}, {s(sT2)}, {s(sW)}")
        I(f"s_lshl_b32 s3, {s(sT2)}, 16")
        I(f"s_lshl_b32 {s(sT7)}, {s(sP0)}, 10")
        I(f"s_add_u32 s3, s3, {s(sT7)}")
        I(f"s_add_u32 s3, s3, {WS_O}")
        I(f"v_and_b32 {v(vT0)}, {7*128}, {v(vT2)}")
        I(f"v_and_b32 {v(vT1)}, 8, {v(vL)}")
        I(f"v_lshlrev_b32 {v(vT1)}, 12, {v(vT1)}")
        I(f"v_add3_u32 {v(vT0)}, {v(vT0)}, {v(vT1)}, s3")
        I(f"s_lshl_b32 s3, {s(sG)}, 7")
        I(f"s_lshl_b32 {s(sT7)}, {s(sM)}, 2")
        I(f"s_add_u32 s3, s3, {s(sT7)}")
        I(f"s_add_u32 s3, s3, {s(sW)}")
        I(f"s_lshl_b32 s3, s3, 9")
        I(f"s_add_u32 s3, s3, {WS_ST - 16*128}")
        I(f"v_add_u32 {v(vT1)}, s3, {v(vT2)}")
        I(f"v_cmp_gt_u32 vcc, 16, {v(vL)}")
        I(f"s_lshl_b32 {s(sT2)}, {s(sT2)}, 7")
        I(f"s_add_u32 {s(sT2)}, {s(sT2)}, {WS_FC}")
        I(f"v_cndmask_b32 {v(vT0)}, {v(vT1)}, {v(vT0)}, vcc")
        I(f"s_lshl_b32 s3, {s(sP2)}, 7")
        I(f"s_add_u32 {s(sT7)}, s3, {WS_FH2}")
        I(f"s_add_u32 s3, s3, {WS_FE}")
        for lane, sr in ((20, s(sT2)), (21, s(sT7)), (22, "s3")):
            I(f"v_cmp_gt_u32 vcc, {lane}, {v(vL)}")
            I(f"v_mov_b32 {v(vT1)}, {sr}")
            I("s_nop 0")
            I(f"v_cndmask_b32 {v(vT0)}, {v(vT1)}, {v(vT0)}, vcc")
        I(f"v_accvgpr_write_b32 {a(164)}, {v(vT0)}")
        self.poll(sT1, vP3)
        self.stamp("C kv ready")

        sKV = sT7
        I(f"s_lshl_b32 {s(sKV)}, {s(sG)}, 14")

        def kv_adv():
            I(f"s_add_u32 {s(sKV)}, {s(sKV)}, 8192")
            I(f"s_and_b32 {s(sKV)}, {s(sKV)}, 0x1ffff")

        def kvload(j):
            b = KV0 + 12 * (j % NR)
            I(f"s_add_u32 s3, {s(sKV)}, {s(sP1)}")
            self.vmem(f"buffer_load_dwordx4 {v(b,4)}, {v(vL16)}, {s(WS,4)}, s3 offen sc1", f"k{j}")
            I(f"s_mov_b64 exec, {s(sMSK,2)}")
            self.vmem(f"buffer_load_dwordx4 {v(b+4,4)}, {v(vP2)}, {s(WS,4)}, s3 offen offset:1024 sc1", f"v{j}")
            self.vmem(f"buffer_load_dwordx4 {v(b+8,4)}, {v(vP2)}, {s(WS,4)}, s3 offen offset:1536 sc1", f"v{j}")
            I("s_mov_b64 exec, -1")

        sQ = sT3
        I(f"s_lshl_b32 {s(sQ)}, {s(sW)}, 11")
        I(f"s_add_u32 {s(sQ)}, {s(sQ)}, 1024")

        def qload(q):
            I(f"s_add_u32 {s(sQ)}, {s(sQ)}, 1024")
            I(f"s_and_b32 {s(sQ)}, {s(sQ)}, 0x1fff")
            I(f"s_add_u32 s3, {s(sQ)}, {s(sT4)}")
            self.vmem(f"buffer_load_dwordx4 {a(Q0+4*q,4)}, {v(vL16)}, {s(WS,4)}, s3 offen sc1", f"q{q}")
        qload(0)
        kvload(0)
        for q in range(1, 4):
            qload(q)

        fill = {}

        def add(u, pos, fn):
            fill.setdefault((u, pos), []).append(fn)
        for q in range(4, 8):
            add(q - 4, 0, lambda q=q: qload(q))
        for j, u in ((1, 1), (2, 4), (3, 6)):
            add(u, 0, kv_adv)
            add(u, 1, lambda j=j: kvload(j))
        for j in range(16 - NR):
            add(8 * (j + 1), 0, kv_adv)
            add(8 * (j + 1), 1, lambda j=j: kvload(j + NR))
        for n in range(16):
            add(9 + n + n // 7, 0, lambda n=n: self.dma(247, WO, (sT5, n * 1024), (sT6, (n // 2) * 16384 + (n % 2) * 64), "wo"))

        def bar_wo():
            self.wait(vm="wo")
            I("s_barrier")
        add(38, 0, bar_wo)
        for n in range(32):
            def rd(n=n):
                for hf in range(2):
                    self.lds(f"ds_read_b64_tr_b16 {a(4*n+2*hf,2)}, {v(248 if n % 2 == 0 else vT3)} offset:{(n//2)*2048+hf*256}", "wo")
            add(39 + n, 0, rd)

        def bar_wo2():
            self.wait(lg="all")
            I("s_barrier")
        add(100, 1, bar_wo2)
        us = [u for u in range(30, 96, 3) if u % 8]
        n = 0
        for p in range(3):
            for i in range(7):
                add(us[n] if n < len(us) else 95, 1, lambda p=p, i=i: self.e_dma(p, i))
                n += 1
        def touch(areg, srd_, off=0):
            def f():
                I(f"v_accvgpr_read_b32 {v(vT2)}, {a(areg)}")
                self.vmem(f"buffer_load_dword {v(255)}, {v(vT2)}, {s(srd_,4)}, 0 offen offset:{off}", "touch")
            return f
        add(27, 0, touch(160, WGU))
        add(29, 0, touch(161, WD))
        for u, args in ((90, (163, WS, 0)), (97, (163, WS, 3584)), (102, (164, WS, 0)), (106, (162, WGU, 0)), (112, (162, WGU, 3584))):
            add(u, 0, touch(*args))
        for q in range(6):
            def dump(q=q):
                ad = 251 + q // 2
                o = O0 + 16 * q
                self.lds(f"ds_write_b128 {v(ad)}, {v(o,4)} offset:{(q&1)*2304}")
                self.lds(f"ds_write_b128 {v(ad)}, {v(o+4,4)} offset:{(q&1)*2304+1024}")
                I(f"v_add_u32 {v(vT0)}, {v(ad)}, {v(254)}")
                self.lds(f"ds_write_b32 {v(vT0)}, {v(o+8)} offset:{(q&1)*2304+2048}")
            add(122 + q, 0, dump)

        Sr = lambda u, lo=0, n=16: v(S0 + 16 * (u % 3) + lo, n)
        Kr = lambda u: v(KV0 + 12 * ((u // 8) % NR), 4)
        Vr = lambda u, f: v(KV0 + 12 * ((u // 8) % NR) + 4 + 4 * f, 4)
        Or = lambda u: v(O0 + 16 * (u % 8), 16)

        def qk(u):
            if u % 8 == 0:
                self.wait(vm=f"v{u//8}")
            if u < 8:
                self.wait(vm=f"q{u}")
            I(f"v_mfma_f32_32x32x16_bf16 {Sr(u)}, {Kr(u)}, {a(Q0+4*(u%8),4)}, 0")
        qk(0)
        self.nop(11)
        I(".p2align 3")
        for u in range(128):
            if u % 8 == 0:
                self.stamp(f"C tile {u//8}", "c")
            for i in range(16):
                if i == 0 and u + 1 < 128:
                    qk(u + 1)
                if i == 4:
                    if u > 0:
                        I(f"v_smfmac_f32_32x32x32_bf16 {Or(u-1)}, {Vr(u-1,1)}, {Sr(u-1,8,8)}, {v(vIDX)}")
                    for fn in fill.get((u, 0), []):
                        fn()
                if i == 10:
                    I(f"v_smfmac_f32_32x32x32_bf16 {Or(u)}, {Vr(u,0)}, {Sr(u,0,8)}, {v(vIDX)}")
                    for fn in fill.get((u, 1), []):
                        fn()
                r = S0 + 16 * (u % 3) + i
                I(f"v_exp_f32 {v(r)}, {v(r)}")
        I("s_nop 1")
        I(f"v_smfmac_f32_32x32x32_bf16 {Or(127)}, {Vr(127,1)}, {Sr(127,8,8)}, {v(vIDX)}")
        self.wait(lg="all")
        I("s_barrier")
        self.stamp("C loop done")
        T = 64
        for par in range(2):
            for r in range(3):
                b = T + 36 * par + 12 * r
                off = r * 4608 + par * 2304
                self.lds(f"ds_read_b128 {v(b,4)}, {v(249)} offset:{off}", f"r{par}")
                self.lds(f"ds_read_b128 {v(b+4,4)}, {v(249)} offset:{off+1024}", f"r{par}")
                self.lds(f"ds_read_b32 {v(b+8)}, {v(250)} offset:{off+2048}", f"r{par}")
        I(f"s_lshl_b32 {s(sT1)}, {s(sG)}, 2")
        I(f"s_add_u32 {s(sT1)}, {s(sT1)}, {s(sW)}")
        I(f"s_lshl_b32 {s(sT2)}, {s(sT1)}, 16")
        I(f"s_lshl_b32 {s(sT3)}, {s(sP0)}, 10")
        I(f"s_add_u32 {s(sT2)}, {s(sT2)}, {s(sT3)}")
        I(f"s_add_u32 {s(sT2)}, {s(sT2)}, {WS_O}")
        I(f"s_add_u32 {s(sT3)}, {s(sT2)}, 32768")
        I(f"s_lshl_b32 {s(sT1)}, {s(sT1)}, 7")
        I(f"s_lshl_b32 {s(sT4)}, {s(sP0)}, 2")
        I(f"s_add_u32 {s(sT1)}, {s(sT1)}, {s(sT4)}")
        I(f"s_add_u32 {s(sT1)}, {s(sT1)}, {WS_FC}")
        I(f"s_mov_b32 {s(sT4)}, {f32(2.0**-30)}")
        I(f"s_mov_b32 {s(sT5)}, {f32(2.0**40)}")
        for par in range(2):
            o = O0 + 16 * (6 + par)
            self.wait(lg=f"r{par}")
            for r in range(3):
                b = T + 36 * par + 12 * r
                for j in range(4):
                    I(f"v_pk_add_f32 {v(o+2*j,2)}, {v(o+2*j,2)}, {v(b+2*j,2)}")
                I(f"v_add_f32 {v(o+8)}, {v(o+8)}, {v(b+8)}")
        for par in range(2):
            o = O0 + 16 * (6 + par)
            t = T + par
            I(f"v_add_f32 {v(t)}, abs({v(o)}), abs({v(o+1)})")
            for j in range(2, 8):
                I(f"v_add_f32 {v(t)}, {v(t)}, abs({v(o+j)})")
        I(f"v_add_f32 {v(T)}, {v(T)}, {v(T+1)}")
        I(f"v_min_f32 {v(T+2)}, {v(O0+96+8)}, {v(O0+112+8)}")
        I(f"v_add_f32 {v(T+3)}, {v(O0+96+8)}, {v(O0+112+8)}")
        I(f"v_cmp_nle_f32 {s(sCMP,2)}, {s(sT4)}, {v(T+2)}")
        I(f"v_cmp_nge_f32 {s(sCMP+2,2)}, {s(sT5)}, {v(T+3)}")
        I(f"v_mov_b32 {v(T+2)}, 0x207")
        I(f"v_cmp_class_f32 vcc, {v(T)}, {v(T+2)}")
        I(f"s_or_b64 {s(sCMP,2)}, {s(sCMP,2)}, {s(sCMP+2,2)}")
        I(f"s_or_b64 vcc, vcc, {s(sCMP,2)}")
        if self.opt.forcefb:
            I("s_branch L_fallback")
        else:
            I("s_cbranch_vccnz L_fallback")
        self.label("L_norm")
        for par in range(2):
            o = O0 + 16 * (6 + par)
            I(f"v_rcp_f32 {v(o+8)}, {v(o+8)}")
        I("s_nop 0")
        for par in range(2):
            o = O0 + 16 * (6 + par)
            for j in range(4):
                I(f"v_pk_mul_f32 {v(o+2*j,2)}, {v(o+2*j,2)}, {v(o+8,2)} op_sel_hi:[1,0]")
            for j in range(4):
                I(f"v_cvt_pk_bf16_f32 {v(T+4*par+j)}, {v(o+2*j)}, {v(o+2*j+1)}")

        def st(fl):
            self.vmem(f"buffer_store_dwordx4 {v(T,4)}, {v(vL16)}, {s(WS,4)}, {s(sT2)} offen {fl}")
            self.vmem(f"buffer_store_dwordx4 {v(T+4,4)}, {v(vL16)}, {s(WS,4)}, {s(sT3)} offen {fl}")
        self.publish(st, sT1, True)
        self.stamp("C published")

    def fallback(self):
        I = self.I
        S0, O0, KV0, Q0 = self.S0, self.O0, self.KV0, self.Q0
        self.label("L_fallback")
        I("s_waitcnt vmcnt(0) lgkmcnt(0)")
        for par in range(2):
            o = O0 + 16 * (6 + par)
            q = a(Q0 + 4 * (6 + par), 4)
            l1, l2 = self.newlab("L_fb1"), self.newlab("L_fb2")
            I(f"v_mov_b32 {v(48)}, 0xff800000")
            I(f"s_mov_b32 s3, {s(sP3)}")
            I(f"s_mov_b32 {s(sCNT)}, 64")
            self.label(l1)
            I(f"buffer_load_dwordx4 {v(KV0,4)}, {v(vL16)}, {s(WS,4)}, s3 offen sc1")
            I("s_waitcnt vmcnt(0)")
            I(f"v_mfma_f32_32x32x16_bf16 {v(S0,16)}, {v(KV0,4)}, {q}, 0")
            self.nop(12)
            for j in range(8):
                I(f"v_max3_f32 {v(48)}, {v(S0+2*j)}, {v(S0+2*j+1)}, {v(48)}")
            I("s_add_u32 s3, s3, 2048")
            I(f"s_sub_u32 {s(sCNT)}, {s(sCNT)}, 1")
            I(f"s_cmp_lg_u32 {s(sCNT)}, 0")
            I(f"s_cbranch_scc1 {l1}")
            I(f"v_mov_b32 {v(49)}, {v(48)}")
            I("s_nop 1")
            I(f"v_permlane32_swap_b32 {v(48)}, {v(49)}")
            I(f"v_max_f32 {v(48)}, {v(48)}, {v(49)}")
            for j in range(16):
                I(f"v_sub_f32 {v(32+j)}, 0, {v(48)}")
            for j in range(16):
                I(f"v_mov_b32 {v(o+j)}, 0")
            I(f"s_mov_b32 s3, {s(sP3)}")
            I(f"s_mov_b32 {s(sCNT)}, 64")
            self.label(l2)
            I(f"buffer_load_dwordx4 {v(KV0,4)}, {v(vL16)}, {s(WS,4)}, s3 offen sc1")
            I(f"s_mov_b64 exec, {s(sMSK,2)}")
            I(f"buffer_load_dwordx4 {v(KV0+4,4)}, {v(vP2)}, {s(WS,4)}, s3 offen offset:1024 sc1")
            I(f"buffer_load_dwordx4 {v(KV0+8,4)}, {v(vP2)}, {s(WS,4)}, s3 offen offset:1536 sc1")
            I("s_mov_b64 exec, -1")
            I("s_waitcnt vmcnt(0)")
            I(f"v_mfma_f32_32x32x16_bf16 {v(S0,16)}, {v(KV0,4)}, {q}, {v(32,16)}")
            self.nop(12)
            for j in range(16):
                I(f"v_exp_f32 {v(S0+j)}, {v(S0+j)}")
            I("s_nop 1")
            I(f"v_smfmac_f32_32x32x32_bf16 {v(o,16)}, {v(KV0+4,4)}, {v(S0,8)}, {v(vIDX)}")
            I(f"v_smfmac_f32_32x32x32_bf16 {v(o,16)}, {v(KV0+8,4)}, {v(S0+8,8)}, {v(vIDX)}")
            I("s_add_u32 s3, s3, 2048")
            I(f"s_sub_u32 {s(sCNT)}, {s(sCNT)}, 1")
            I(f"s_cmp_lg_u32 {s(sCNT)}, 0")
            I(f"s_cbranch_scc1 {l2}")
            self.nop(12)
        I("s_branch L_norm")

    X1 = 232

    def phaseD(self):
        I = self.I
        I(f"s_lshr_b32 {s(sT1)}, {s(sM)}, 3")
        I(f"s_lshl_b32 {s(sT2)}, {s(sG)}, 2")
        I(f"s_add_u32 {s(sT1)}, {s(sT1)}, {s(sT2)}")
        I(f"s_lshl_b32 {s(sT2)}, {s(sT1)}, 1")
        I(f"s_and_b32 {s(sT3)}, {s(sW)}, 1")
        I(f"s_add_u32 {s(sP0)}, {s(sT2)}, {s(sT3)}")
        I(f"s_and_b32 {s(sT2)}, {s(sM)}, 7")
        I(f"s_lshl_b32 {s(sT2)}, {s(sT2)}, 1")
        I(f"s_lshr_b32 {s(sT3)}, {s(sW)}, 1")
        I(f"s_add_u32 {s(sP1)}, {s(sT2)}, {s(sT3)}")
        I(f"s_lshl_b32 {s(sT1)}, {s(sT1)}, 7")
        I(f"s_add_u32 {s(sT1)}, {s(sT1)}, {WS_FC}")
        I(f"v_and_b32 {v(vT0)}, 31, {v(vL)}")
        I(f"v_lshlrev_b32 {v(vT0)}, 10, {v(vT0)}")
        I(f"v_lshrrev_b32 {v(vT1)}, 5, {v(vL)}")
        I(f"v_lshlrev_b32 {v(vT2)}, 4, {v(vT1)}")
        I(f"v_add_u32 {v(249)}, {v(vT0)}, {v(vT2)}")
        I(f"s_lshl_b32 {s(sT2)}, {s(sP0)}, 15")
        I(f"s_lshl_b32 {s(sT4)}, {s(sP1)}, 6")
        I(f"s_add_u32 {s(sP3)}, {s(sT2)}, {s(sT4)}")
        self.vmem(f"buffer_load_dwordx4 {v(32,4)}, {v(249)}, {s(X,4)}, {s(sP3)} offen", "x")
        self.vmem(f"buffer_load_dwordx4 {v(36,4)}, {v(249)}, {s(X,4)}, {s(sP3)} offen offset:32", "x")
        I(f"v_lshlrev_b32 {v(vT1)}, 5, {v(vT1)}")
        I(f"s_lshl_b32 s3, {s(sT3)}, 7")
        I(f"s_add_u32 s3, s3, {LDS_MOD}")
        I(f"v_add_u32 {v(250)}, s3, {v(vT1)}")
        I("s_barrier")
        for i in range(7):
            self.e_dma(3, i)
        for vec, dst in ((0, 40), (1, 208), (2, 192)):
            for j in range(4):
                self.lds(f"ds_read_b128 {v(dst+4*j,4)}, {v(250)} offset:{vec*256 + (j//2)*64 + (j%2)*16}", "mod")
        I(f"s_lshl_b32 s3, {s(sT3)}, 14")
        I(f"s_add_u32 {s(sT2)}, {s(sT2)}, s3")
        I(f"s_add_u32 {s(sT2)}, {s(sT2)}, {WS_O}")
        I(f"s_lshl_b32 s3, {s(sW)}, 12")
        I(f"s_add_u32 s3, s3, {5*PAIR}")
        I(f"v_add_u32 {v(251)}, s3, {v(vL16)}")
        I(f"s_xor_b32 s3, {s(sW)}, 2")
        I(f"s_lshl_b32 s3, s3, 12")
        I(f"s_add_u32 s3, s3, {5*PAIR}")
        I(f"v_add_u32 {v(252)}, s3, {v(vL16)}")
        self.poll(sT1, vP0)
        self.stamp("D start")

        def oload(n):
            if n % 4 == 0 and n:
                I(f"s_add_u32 {s(sT2)}, {s(sT2)}, 4096")
            self.vmem(f"buffer_load_dwordx4 {v(64+4*n,4)}, {v(vL16)}, {s(WS,4)}, {s(sT2)} offen offset:{(n%4)*1024} sc1", f"o{n}")
        for n in range(10):
            oload(n)
        for n in range(16):
            self.wait(vm=f"o{n}")
            I(f"v_mfma_f32_32x32x16_bf16 {v(128,16)}, {a(8*n+4,4)}, {v(64+4*n,4)}, {v(128,16) if n else '0'}")
            if n + 10 < 16:
                oload(n + 10)
            I(f"v_mfma_f32_32x32x16_bf16 {v(16,16)}, {a(8*n,4)}, {v(64+4*n,4)}, {v(16,16) if n else '0'}")
        I(f"s_lshl_b32 {s(sT1)}, {s(sP0)}, 13")
        I(f"s_add_u32 {s(sT1)}, {s(sT1)}, {WS_ST}")
        I(f"s_lshl_b32 {s(sT2)}, {s(sP1)}, 9")
        I(f"s_add_u32 {s(sT2)}, {s(sT2)}, {s(sT1)}")
        I(f"s_lshl_b32 {s(sT3)}, {s(sP0)}, 7")
        I(f"s_lshl_b32 {s(sT5)}, {s(sP1)}, 2")
        I(f"s_add_u32 {s(sT7)}, {s(sT3)}, {s(sT5)}")
        I(f"s_add_u32 {s(sT7)}, {s(sT7)}, {WS_FH2}")
        I(f"s_lshl_b32 {s(sT3)}, {s(sP0)}, 15")
        I(f"s_lshl_b32 {s(sT5)}, {s(sP1)}, 11")
        I(f"s_add_u32 {s(sT3)}, {s(sT3)}, {s(sT5)}")
        I(f"s_add_u32 {s(sT3)}, {s(sT3)}, {WS_H2}")
        for j in range(4):
            self.lds(f"ds_write_b128 {v(252)}, {v(128+4*j,4)} offset:{j*1024}", "xw")
        I(f"v_lshlrev_b32 {v(253)}, 2, {v(vP0)}")
        I(f"v_lshrrev_b32 {v(vT2)}, 5, {v(vL)}")
        I(f"v_lshlrev_b32 {v(vT2)}, 12, {v(vT2)}")
        I(f"v_add_u32 {v(vT2)}, {v(vT2)}, {v(253)}")
        for j in range(8):
            self.unpack(64 + 2 * j, 65 + 2 * j, 32 + j)
        self.wait(lg="all")
        I("s_barrier")
        for j in range(4):
            self.lds(f"ds_read_b128 {v(128+4*j,4)}, {v(251)} offset:{j*1024}", f"xr{j}")
        for j in range(4):
            self.wait(lg=f"xr{j}")
            for i in range(2):
                I(f"v_pk_add_f32 {v(16+4*j+2*i,2)}, {v(16+4*j+2*i,2)}, {v(128+4*j+2*i,2)}")
        for j in range(8):
            I(f"v_cvt_pk_bf16_f32 {v(32+j)}, {v(16+2*j)}, {v(17+2*j)}")
        for j in range(8):
            self.unpack(16 + 2 * j, 17 + 2 * j, 32 + j)
        for j in range(8):
            I(f"v_pk_mul_f32 {v(16+2*j,2)}, {v(16+2*j,2)}, {v(40+2*j,2)}")
        for j in range(8):
            I(f"v_cvt_pk_bf16_f32 {v(32+j)}, {v(16+2*j)}, {v(17+2*j)}")
        for j in range(8):
            self.unpack(16 + 2 * j, 17 + 2 * j, 32 + j)
        for j in range(8):
            I(f"v_pk_add_f32 {v(16+2*j,2)}, {v(16+2*j,2)}, {v(64+2*j,2)}")
        for j in range(8):
            I(f"v_cvt_pk_bf16_f32 {v(self.X1+j)}, {v(16+2*j)}, {v(17+2*j)}")
        for j in range(8):
            self.unpack(16 + 2 * j, 17 + 2 * j, self.X1 + j)
        I(f"v_pk_mul_f32 {v(34,2)}, {v(16,2)}, {v(16,2)}")
        I(f"v_pk_add_f32 {v(32,2)}, {v(16,2)}, {v(18,2)}")
        for j in range(1, 8):
            I(f"v_pk_fma_f32 {v(34,2)}, {v(16+2*j,2)}, {v(16+2*j,2)}, {v(34,2)}")
            if j > 1:
                I(f"v_pk_add_f32 {v(32,2)}, {v(32,2)}, {v(16+2*j,2)}")
        I(f"v_add_f32 {v(32)}, {v(32)}, {v(33)}")
        I(f"v_add_f32 {v(33)}, {v(34)}, {v(35)}")
        I(f"v_mov_b32 {v(34)}, {v(32)}")
        I(f"v_mov_b32 {v(35)}, {v(33)}")
        I("s_nop 0")
        I(f"v_permlane32_swap_b32 {v(32)}, {v(34)}")
        I(f"v_permlane32_swap_b32 {v(33)}, {v(35)}")
        I(f"v_pk_add_f32 {v(32,2)}, {v(32,2)}, {v(34,2)}")
        I(f"v_mov_b32 {v(34)}, {v(33)}")
        I(f"v_mov_b32 {v(33)}, {v(vTAG)}")
        I(f"v_mov_b32 {v(35)}, {v(vTAG)}")
        self.stamp("D mfma done")
        self.local_store(lambda fl: self.vmem(f"buffer_store_dwordx4 {v(32,4)}, {v(253)}, {s(WS,4)}, {s(sT2)} offen {fl}"))

        def ld():
            for j in range(8):
                I(f"buffer_load_dwordx4 {v(64+4*j,4)}, {v(vT2)}, {s(WS,4)}, {s(sT1)} offen offset:{j*512} sc1")
        self.gpoll(ld, range(65, 96, 2), "stats")
        self.stamp("D stats", "d")
        for str_ in (16, 8, 4):
            for j in range(0, str_, 4):
                I(f"v_add_f32 {v(64+j)}, {v(64+j)}, {v(64+j+str_)}")
                I(f"v_add_f32 {v(66+j)}, {v(66+j)}, {v(66+j+str_)}")
        I(f"v_mov_b32 {v(32)}, {v(64)}")
        I(f"v_mov_b32 {v(33)}, {v(66)}")
        I(f"v_mov_b32 {v(34)}, {v(32)}")
        I(f"v_mov_b32 {v(35)}, {v(33)}")
        I("s_nop 0")
        I(f"v_permlane32_swap_b32 {v(32)}, {v(34)}")
        I(f"v_permlane32_swap_b32 {v(33)}, {v(35)}")
        I(f"v_pk_add_f32 {v(32,2)}, {v(32,2)}, {v(34,2)}")
        I(f"v_mul_f32 {v(32)}, {f32(1/512)}, {v(32)}")
        I(f"v_mul_f32 {v(33)}, {f32(1/512)}, {v(33)}")
        I(f"v_fma_f32 {v(34)}, -{v(32)}, {v(32)}, {v(33)}")
        I(f"v_max_f32 {v(34)}, 0, {v(34)}")
        self.ln_scalars(32, 34, False)
        I(f"v_mul_f32 {v(32)}, {v(32)}, {v(34)}")
        for j in range(8):
            I(f"v_pk_fma_f32 {v(16+2*j,2)}, {v(16+2*j,2)}, {v(34,2)}, {v(32,2)} op_sel_hi:[1,0,0] neg_lo:[0,0,1] neg_hi:[0,0,1]")
        for j in range(8):
            I(f"v_pk_fma_f32 {v(16+2*j,2)}, {v(16+2*j,2)}, {v(192+2*j,2)}, {v(208+2*j,2)}")
        for j in range(8):
            I(f"v_cvt_pk_bf16_f32 {v(40+j)}, {v(16+2*j)}, {v(17+2*j)}")

        def st(fl):
            self.vmem(f"buffer_store_dwordx4 {v(40,4)}, {v(vL16)}, {s(WS,4)}, {s(sT3)} offen {fl}")
            self.vmem(f"buffer_store_dwordx4 {v(44,4)}, {v(vL16)}, {s(WS,4)}, {s(sT3)} offen offset:1024 {fl}")
        self.publish(st, sT7, True)
        self.stamp("D published")
        for i in range(7):
            self.e_dma(4, i)

    def wd_slot(self, n):
        n %= 18
        return 87552 + n * 8192 if n < 8 else (n - 8) * 8192

    def wd_dma(self, n):
        for c in range(2):
            self.dma(247, WD, (sT6, self.wd_slot(n) + c * 1024), (sT7, n * 16384 + c * 64), f"wd{n}")

    def phaseE(self):
        I = self.I
        ACC = 64; WB = 176
        I(f"s_lshl_b32 {s(sT1)}, {s(sP2)}, 7")
        I(f"s_add_u32 {s(sT1)}, {s(sT1)}, {WS_FH2}")
        I(f"s_lshl_b32 {s(sT2)}, {s(sP2)}, 15")
        I(f"s_add_u32 {s(sT2)}, {s(sT2)}, {WS_H2}")
        I(f"v_mul_u32_u24 {v(vT0)}, 224, {v(vP5)}")
        I(f"v_bfe_u32 {v(vT1)}, {v(vL)}, 4, 1")
        I(f"v_mul_u32_u24 {v(vT1)}, 7296, {v(vT1)}")
        I(f"v_add3_u32 {v(251)}, {v(vT0)}, {v(vT1)}, {v(vP4)}")
        I(f"v_add_u32 {v(252)}, {2*PAIR}, {v(251)}")
        I(f"v_add_u32 {v(253)}, {4*PAIR}, {v(251)}")
        I(f"s_lshl_b32 {s(sT6)}, {s(sW)}, 11")
        I(f"s_mul_i32 {s(sT7)}, {s(sW)}, {448*1024}")
        self.poll(sT1, vP1)
        PD = 6

        def hload(ks):
            if ks % 4 == 0 and ks:
                I(f"s_add_u32 {s(sT2)}, {s(sT2)}, 4096")
            self.vmem(f"buffer_load_dwordx4 {a(4*ks,4)}, {v(vL16)}, {s(WS,4)}, {s(sT2)} offen offset:{(ks%4)*1024} sc1", f"h{ks}")
        for ks in range(PD):
            hload(ks)
        I("s_barrier")
        self.stamp("E start")

        def wread(ks, t):
            pos = (ks // 4) % 5
            base = 251 + pos // 2
            off = (pos % 2) * PAIR + ((ks // 2) % 2) * SLOT + (ks % 2) * 3584 + t * 32
            buf = WB + 28 * (ks % 2) + 4 * t
            for hf in range(2):
                self.lds(f"ds_read_b64_tr_b16 {v(buf+2*hf,2)}, {v(base)} offset:{off+hf*896}", f"w{ks}_{t}")
        for t in range(7):
            wread(0, t)
        side = {}
        for n in range(32 - PD):
            side.setdefault((n // 3, 1 + 2 * (n % 3)), []).append(lambda n=n: hload(n + PD))
        n = 0
        for p in (5, 6, 7):
            for i in range(7):
                side.setdefault((9 + n // 3 + (1 if n >= 9 else 0), 2 * (n % 3)), []).append(lambda p=p, i=i: self.e_dma(p, i))
                n += 1
        wd_at = {19: (0, 1, 2), 23: (3, 4, 5, 6, 7), 27: (8, 9, 10), 30: (11, 12, 13, 14)}
        for k, ns in wd_at.items():
            for i, n in enumerate(ns):
                side.setdefault((k + i // 2, 1 + 3 * (i % 2)), []).append(lambda n=n: self.wd_dma(n))
        for ks in range(32):
            if ks % 4 == 0 and ks:
                self.stamp(f"E ks{ks}", "e")
            if ks in (8, 12, 29):
                I("s_barrier")
            if ks in (18, 22, 26):
                self.wait(vm=f"ep{5 + (ks-18)//4}")
                I("s_barrier")
            for t in range(7):
                self.wait(vm=f"h{ks}" if t == 0 else None, lg=f"w{ks}_{t}")
                acc = v(ACC + 16 * t, 16)
                I(f"v_mfma_f32_32x32x16_bf16 {acc}, {v(WB+28*(ks%2)+4*t,4)}, {a(4*ks,4)}, {acc if ks else '0'}")
                if ks + 1 < 32:
                    wread(ks + 1, t)
                for fn in side.get((ks, t), []):
                    fn()
        I("s_barrier")
        for n in (15, 16, 17):
            self.wd_dma(n)
        self.stamp("E mfma done")
        I(f"s_mul_i32 {s(sT1)}, {s(sP2)}, {112*1024}")
        I(f"s_and_b32 {s(sT2)}, {s(sM)}, 15")
        I(f"s_mul_i32 {s(sT3)}, {s(sT2)}, {7*1024}")
        I(f"s_add_u32 {s(sT1)}, {s(sT1)}, {s(sT3)}")
        I(f"s_add_u32 {s(sT1)}, {s(sT1)}, {WS_HH}")
        I(f"s_add_u32 {s(sT3)}, {s(sT1)}, 4096")
        I(f"s_lshl_b32 {s(sT4)}, {s(sP2)}, 7")
        I(f"s_lshl_b32 {s(sT2)}, {s(sT2)}, 2")
        I(f"s_add_u32 {s(sT4)}, {s(sT4)}, {s(sT2)}")
        I(f"s_add_u32 {s(sT4)}, {s(sT4)}, {WS_FE}")
        k0 = math.sqrt(2.0 / math.pi)
        c0 = -2.0 * k0 * LOG2E
        c1 = c0 * 0.044715
        I(f"v_mov_b32 {v(16)}, {f32(c0)}")
        I(f"v_mov_b32 {v(18)}, {f32(c1)}")
        I(f"v_mov_b32 {v(20)}, 1.0")
        for t in range(7):
            g = ACC + 16 * t
            u = g + 8
            T = 24
            for j in range(4):
                I(f"v_pk_mul_f32 {v(T+2*j,2)}, {v(g+2*j,2)}, {v(g+2*j,2)}")
            for j in range(4):
                I(f"v_pk_fma_f32 {v(T+2*j,2)}, {v(T+2*j,2)}, {v(18,2)}, {v(16,2)} op_sel_hi:[1,0,0]")
            for j in range(4):
                I(f"v_pk_mul_f32 {v(T+2*j,2)}, {v(T+2*j,2)}, {v(g+2*j,2)}")
            for j in range(8):
                I(f"v_exp_f32 {v(T+j)}, {v(T+j)}")
            for j in range(4):
                I(f"v_pk_mul_f32 {v(u+2*j,2)}, {v(u+2*j,2)}, {v(g+2*j,2)}")
            for j in range(4):
                I(f"v_pk_add_f32 {v(T+2*j,2)}, {v(T+2*j,2)}, {v(20,2)} op_sel_hi:[1,0]")
            for j in range(8):
                I(f"v_rcp_f32 {v(T+j)}, {v(T+j)}")
            I("s_nop 0")
            for j in range(4):
                I(f"v_pk_mul_f32 {v(u+2*j,2)}, {v(u+2*j,2)}, {v(T+2*j,2)}")
            for j in range(4):
                I(f"v_cvt_pk_bf16_f32 {v(WB+4*t+j)}, {v(u+2*j)}, {v(u+2*j+1)}")

        def st(fl):
            for t in range(7):
                self.vmem(f"buffer_store_dwordx4 {v(WB+4*t,4)}, {v(vL16)}, {s(WS,4)}, {s(sT1 if t < 4 else sT3)} offen offset:{(t%4)*1024} {fl}")
        self.stamp("E epilogue done")
        self.publish(st, sT4, True)
        self.stamp("E published")

    def phaseF(self):
        I = self.I
        ACC = 64; WB = 16
        I(f"s_and_b32 {s(sT1)}, {s(sP0)}, 0x7e")
        I(f"s_lshl_b32 {s(sT1)}, {s(sT1)}, 7")
        I(f"s_lshl_b32 {s(sT2)}, {s(sW)}, 4")
        I(f"s_add_u32 {s(sT1)}, {s(sT1)}, {s(sT2)}")
        I(f"s_add_u32 {s(sT1)}, {s(sT1)}, {WS_FE}")
        I(f"v_and_b32 {v(vT1)}, 1, {v(vL)}")
        I(f"v_lshlrev_b32 {v(vT1)}, 7, {v(vT1)}")
        I(f"v_and_b32 {v(vT2)}, 6, {v(vL)}")
        I(f"v_lshlrev_b32 {v(vT2)}, 1, {v(vT2)}")
        I(f"v_add_u32 {v(vT1)}, {v(vT1)}, {v(vT2)}")
        I(f"s_mul_i32 {s(sT3)}, {s(sW)}, {28*1024}")
        I(f"s_add_u32 {s(sT3)}, {s(sT3)}, {WS_HH}")
        I(f"s_mul_i32 {s(sT2)}, {s(sP0)}, {112*1024}")
        I(f"s_add_u32 {s(sT2)}, {s(sT2)}, {s(sT3)}")
        I(f"s_xor_b32 {s(sT4)}, {s(sP0)}, 1")
        I(f"s_mul_i32 {s(sT4)}, {s(sT4)}, {112*1024}")
        I(f"s_add_u32 {s(sT3)}, {s(sT3)}, {s(sT4)}")
        I(f"s_lshr_b32 s3, {s(sW)}, 1")
        I("s_lshl_b32 s3, s3, 10")
        I(f"s_add_u32 {s(sT4)}, s3, {s(sT6)}")
        I(f"v_add_u32 {v(251)}, {s(sT4)}, {v(vTR)}")
        I(f"v_xor_b32 {v(252)}, 1024, {v(251)}")
        I(f"v_add_u32 {v(253)}, 65536, {v(251)}")
        I(f"v_add_u32 {v(254)}, 65536, {v(252)}")
        I(f"v_add_u32 {v(vT3)}, 0x20000, {v(251)}")
        I(f"v_add_u32 {v(vP3)}, 0x20000, {v(252)}")
        for j in range(4):
            self.lds(f"ds_read_b128 {v(192+4*j,4)}, {v(250)} offset:{3*256 + (j//2)*64 + (j%2)*16}", "gb")
        self.poll(sT1, vT1)
        self.stamp("F start")
        PD = 5

        def hload(n, t):
            if n % 4 == 0 and n:
                I(f"s_add_u32 {s(sT2+t)}, {s(sT2+t)}, 4096")
            self.vmem(f"buffer_load_dwordx4 {a(8*n+4*t,4)}, {v(vL16)}, {s(WS,4)}, {s(sT2+t)} offen offset:{(n%4)*1024} sc1", f"h{n}")
        for n in range(PD):
            hload(n, 0)
            hload(n, 1)

        def wread(n, c):
            ad = self.wd_slot(n)
            seg = ad >> 16
            buf = WB + 8 * (n % 3)
            if n >= 18:
                self.wait(vm=f"wd{n}")
            base = ((251, 252), (253, 254), (vT3, vP3))[seg][c]
            for hf in range(2):
                self.lds(f"ds_read_b64_tr_b16 {v(buf+4*c+2*hf,2)}, {v(base)} offset:{(ad & 0xffff)+hf*256}", f"w{n}")
        for n in range(2):
            wread(n, 0)
            wread(n, 1)
        for n in range(28):
            buf = WB + 8 * (n % 3)
            if n % 4 == 0 and n:
                self.stamp(f"F n{n}", "f")
            self.wait(vm=f"h{n}", lg=f"w{n}")
            for c in range(2):
                for t in range(2):
                    acc = v(ACC + 16 * (2 * c + t), 16)
                    I(f"v_mfma_f32_32x32x16_bf16 {acc}, {v(buf+4*c,4)}, {a(8*n+4*t,4)}, {acc if n else '0'}")
                    if c == 0 and n + PD < 28:
                        hload(n + PD, t)
                    if c == 1 and n + 2 < 28:
                        wread(n + 2, t)
                    if c == 1 and t == 1 and n + 18 < 28:
                        self.wd_dma(n + 18)
        self.stamp("F mfma done")
        I(f"v_add_u32 {v(vT0)}, {s(sT6)}, {v(vL16)}")
        for r in range(3):
            I(f"v_xor_b32 {v(vT1+r)}, {(r+1)*2048}, {v(vT0)}")
        self.nop(8)
        for r in range(3):
            for j in range(4):
                self.lds(f"ds_write_b128 {v(vT0)}, {v(ACC+16*(r+1)+4*j,4)} offset:{(2*r+j//2)*8192+(j%2)*1024}")
        for j in range(8):
            self.unpack(16 + 2 * j, 17 + 2 * j, self.X1 + j)
        self.wait(lg="all")
        I("s_barrier")
        for r in range(3):
            for j in range(4):
                self.lds(f"ds_read_b128 {v(ACC+16*(r+1)+4*j,4)}, {v(vT1+r)} offset:{(2*r+j//2)*8192+(j%2)*1024}", f"r{r}")
        for r in range(3):
            self.wait(lg=f"r{r}")
            for j in range(8):
                I(f"v_pk_add_f32 {v(ACC+2*j,2)}, {v(ACC+2*j,2)}, {v(ACC+16*(r+1)+2*j,2)}")
        for j in range(8):
            I(f"v_cvt_pk_bf16_f32 {v(32+j)}, {v(ACC+2*j)}, {v(ACC+1+2*j)}")
        for j in range(8):
            self.unpack(ACC + 2 * j, ACC + 1 + 2 * j, 32 + j)
        for j in range(8):
            I(f"v_pk_mul_f32 {v(ACC+2*j,2)}, {v(ACC+2*j,2)}, {v(192+2*j,2)}")
        for j in range(8):
            I(f"v_cvt_pk_bf16_f32 {v(32+j)}, {v(ACC+2*j)}, {v(ACC+1+2*j)}")
        for j in range(8):
            self.unpack(ACC + 2 * j, ACC + 1 + 2 * j, 32 + j)
        for j in range(8):
            I(f"v_pk_add_f32 {v(ACC+2*j,2)}, {v(ACC+2*j,2)}, {v(16+2*j,2)}")
        for j in range(8):
            I(f"v_cvt_pk_bf16_f32 {v(32+j)}, {v(ACC+2*j)}, {v(ACC+1+2*j)}")
        self.vmem(f"buffer_store_dwordx4 {v(32,4)}, {v(249)}, {s(OUT,4)}, {s(sP3)} offen")
        self.vmem(f"buffer_store_dwordx4 {v(36,4)}, {v(249)}, {s(OUT,4)}, {s(sP3)} offen offset:32")

    def epilogue(self):
        I = self.I
        lab = self.newlab("L_noep")
        I(f"s_add_u32 s3, s2, {s(sW)}")
        I("s_cmp_lg_u32 s3, 0")
        I(f"s_cbranch_scc1 {lab}")
        if self.opt.stop not in ("A", "B", "C"):
            I(f"buffer_store_dword {v(vTAG)}, off, {s(WS,4)}, 0 offset:{WS_E} sc1")
        self.label(lab)
        if self.opt.stamps:
            I("s_waitcnt vmcnt(0)")
            self.stamp("end")
            I("s_lshl_b32 s3, s2, 2")
            I(f"s_add_u32 s3, s3, {s(sW)}")
            I("s_lshl_b32 s3, s3, 7")
            I(f"s_add_u32 s3, s3, {WS_DBG}")
            for i in range(self.nstamp):
                I(f"v_mov_b32 {v(vT0)}, {s(sSTAMP+2+i)}")
                I(f"buffer_store_dword {v(vT0)}, off, {s(WS,4)}, s3 offset:{4*i}")
            I(f"s_memtime {s(sSTAMP,2)}")
            I("s_waitcnt lgkmcnt(0)")
            I(f"s_sub_u32 {s(sSTAMP)}, {s(sSTAMP)}, s100")
            I(f"v_mov_b32 {v(vT0)}, {s(sSTAMP)}")
            I(f"buffer_store_dword {v(vT0)}, off, {s(WS,4)}, s3 offset:120")
            I(f"v_mov_b32 {v(vT0)}, {s(sFAST)}")
            I(f"buffer_store_dword {v(vT0)}, off, {s(WS,4)}, s3 offset:124")

    def build(self):
        self.prologue_all()
        phases = [self.phaseA, self.phaseB, self.phaseC, self.phaseD, self.phaseE, self.phaseF]
        for i, ph in enumerate(phases):
            ph()
            if self.opt.stop == "ABCDEF"[i]:
                break
        self.epilogue()
        self.label("L_end")
        self.I("s_endpgm")
        self.label("L_code_end")
        if self.opt.stop not in ("A", "B"):
            self.fallback()

    def prologue_all(self):
        self.prologue()


HEADER = """; Fused adaLN-modulated block: x + ga*MHA(LN(x)) then + gb*GEGLU(LN(.)), S=2048 D=512 H=32 Df=1792.
; @launch grid=(256,1,1) block=(256,1,1) lds={lds}
.amdgcn_target "amdgcn-amd-amdhsa--gfx950"
.text
.globl {name}_kernel
.p2align 8
.type {name}_kernel,@function
{name}_kernel:
"""
FOOTER = """
.section .rodata,"a"
.p2align 6
.amdhsa_kernel {name}_kernel
  .amdhsa_next_free_vgpr 512
  .amdhsa_next_free_sgpr 102
  .amdhsa_accum_offset 256
  .amdhsa_group_segment_fixed_size 0
  .amdhsa_kernarg_size 96
  .amdhsa_user_sgpr_count 2
  .amdhsa_user_sgpr_kernarg_segment_ptr 1
  .amdhsa_system_sgpr_workgroup_id_x 1
  .amdhsa_float_denorm_mode_32 3
.end_amdhsa_kernel
"""


def main():
    ap = argparse.ArgumentParser()
    ap.add_argument("-o", default=f"cdna_kernels/{NAME}.s")
    ap.add_argument("--stamps", action="store_true")
    ap.add_argument("--stop", default="")
    ap.add_argument("--fine", default="")
    ap.add_argument("--cyc", action="store_true")
    ap.add_argument("--allones", action="store_true")
    ap.add_argument("--slow", action="store_true")
    ap.add_argument("--forcefb", action="store_true")
    ap.add_argument("--codepf", type=int, default=0)
    opt = ap.parse_args()
    g = Gen(opt)
    g.build()
    body = g.text()
    probs = check_hazards(body)
    for p in probs:
        print("HAZARD", p)
    open(opt.o, "w").write(HEADER.format(name=NAME, lds=LDS_BYTES) + body + FOOTER.format(name=NAME))
    import subprocess
    r = subprocess.run(["clang", "-x", "assembler", "-target", "amdgcn-amd-amdhsa", "-mcpu=gfx950", "-c", opt.o, "-o", "gen_chk.o"], capture_output=True, text=True)
    if r.returncode:
        print(r.stderr[:1500])
    print("wrote", opt.o, "lines", len(g.L), "hazards", len(probs), "asm", "ok" if r.returncode == 0 else "FAILED")


if __name__ == "__main__":
    main()
```

```python
import sys, os, subprocess, struct, ctypes
sys.path.insert(0, "cdna_kernels")
import numpy as np
import cdna_launch as cl

TEMPLATE = """; @launch grid=({grid},1,1) block=({block},1,1) lds={lds}
.amdgcn_target "amdgcn-amd-amdhsa--gfx950"
.text
.globl mb_kernel
.p2align 8
.type mb_kernel,@function
mb_kernel:
    s_load_dwordx2 s[4:5], s[0:1], 0
    s_load_dwordx2 s[6:7], s[0:1], 8
    s_waitcnt lgkmcnt(0)
    s_mov_b32 s8, s4
    s_mov_b32 s9, s5
    s_mov_b32 s10, {outbytes}
    s_mov_b32 s11, 0x00020000
    s_mov_b32 s12, s6
    s_mov_b32 s13, s7
    s_mov_b32 s14, {inbytes}
    s_mov_b32 s15, 0x00020000
{init}
    s_mov_b32 s20, {iters}
    s_barrier
    s_memtime s[16:17]
    s_memrealtime s[24:25]
    s_waitcnt lgkmcnt(0)
.p2align 6
L_loop:
{body}
    s_sub_u32 s20, s20, 1
    s_cmp_lg_u32 s20, 0
    s_cbranch_scc1 L_loop
    s_waitcnt vmcnt(0) lgkmcnt(0)
    s_memtime s[18:19]
    s_memrealtime s[26:27]
    s_waitcnt lgkmcnt(0)
    s_sub_u32 s18, s18, s16
    s_sub_u32 s26, s26, s24
    v_mov_b32 v2, s18
    v_mov_b32 v3, s26
    v_lshrrev_b32 v1, 6, v0
    s_mul_i32 s3, s2, {wavesperwg}
    v_add_u32 v1, s3, v1
    v_lshlrev_b32 v1, 3, v1
    buffer_store_dwordx2 v[2:3], v1, s[8:11], 0 offen
    s_waitcnt vmcnt(0)
    s_endpgm
.section .rodata,"a"
.p2align 6
.amdhsa_kernel mb_kernel
  .amdhsa_next_free_vgpr {vgpr}
  .amdhsa_next_free_sgpr 102
  .amdhsa_accum_offset {accum}
  .amdhsa_group_segment_fixed_size 0
  .amdhsa_kernarg_size 96
  .amdhsa_user_sgpr_count 2
  .amdhsa_user_sgpr_kernarg_segment_ptr 1
  .amdhsa_system_sgpr_workgroup_id_x 1
  .amdhsa_float_denorm_mode_32 3
.end_amdhsa_kernel
"""

_ctr = [0]
def build(name, asm):
    _ctr[0] += 1
    name = f"{name}_{_ctr[0]}"
    os.makedirs("mbout", exist_ok=True)
    s = f"mbout/{name}.s"; co = f"mbout/{name}.co"
    open(s, "w").write(cl.with_harness_metadata(asm, "mb_kernel", 2))
    r = subprocess.run(["clang", "-x", "assembler", "-target", "amdgcn-amd-amdhsa", "-mcpu=gfx950", s, "-o", co], capture_output=True, text=True)
    if r.returncode:
        print(r.stderr[:800]); raise SystemExit(1)
    return co

_in = None
def run(name, body, init="", unroll=1, grid=256, block=256, lds=0, iters=2000, vgpr=128, inbytes=1<<24, reps=3, check_only=False, accum=None):
    global _in
    wpw = block // 64
    body = '\n'.join([body]*unroll)
    outbytes = grid * wpw * 8
    asm = TEMPLATE.format(grid=grid, block=block, lds=lds, outbytes=outbytes, inbytes=inbytes, init=init, iters=iters, body=body,
                          wavesperwg=wpw, vgpr=vgpr, accum=accum or min(256,(vgpr + 3) // 4 * 4))
    co = build(name, asm)
    if check_only or not os.path.exists('/dev/kfd'):
        p = cl.address_register_problem(co, "mb_kernel")
        print(name, "ok" if p is None else p)
        return None
    k = cl.AsmKernel(co, "mb_kernel")
    out = cl.DeviceBuffer(outbytes)
    if _in is None or _in.nbytes < inbytes:
        rng = np.random.default_rng(0)
        a = (rng.standard_normal(inbytes // 4).astype(np.float32))
        _in = cl.DeviceBuffer.from_numpy(a)
    ka = cl.pack_ptr_kernargs([out.ptr, _in.ptr])
    res = []
    for r in range(reps):
        k.launch((grid, 1, 1), (block, 1, 1), ka, lds)
        cl._check(cl._hip.hipDeviceSynchronize())
        o = out.to_numpy(np.uint32, (grid * wpw, 2))
        res.append((np.median(o[:, 0]) / iters, o[:, 0].max() / iters, np.median(o[:, 0] / np.maximum(o[:, 1],1)) * 0.1))
    k.unload()
    med, mx, ghz = res[-1]
    wps = max(1, wpw // 4)
    print(f"{name:40s} waves/wg={wpw} grid={grid} cyc/body med={med/unroll:9.2f} max={mx/unroll:9.2f} max/wps={mx/unroll/wps:9.2f} per24={mx/unroll/wps/24:7.2f} clk={ghz:5.2f}GHz ns/24={med/unroll/24/ghz:7.2f}", flush=True)
    return med
```

```python
from mbl import run
def rep(n, f): return "\n".join(f(i) for i in range(n))
init = """
    v_and_b32 v1, 63, v0
    v_lshlrev_b32 v2, 4, v0
    s_lshl_b32 s34, s2, 16
""" + rep(32, lambda i: f"    buffer_load_dwordx4 v[{100+4*i}:{103+4*i}], v2, s[12:15], s34 offen\n    s_add_u32 s34, s34, 4096") + "\n    s_waitcnt vmcnt(0)\n" + \
  rep(64, lambda i: f"    v_cvt_pk_bf16_f32 v{100+i}, v{100+2*i}, v{101+2*i}") + "\n" + \
  rep(128, lambda i: f"    v_accvgpr_write_b32 a{i}, v{100+(i*7)%64}") + "\n" + \
  rep(16, lambda i: f"    ds_write_b128 v2, v[{100+4*i}:{103+4*i}] offset:{i*4096}") + "\n    s_waitcnt lgkmcnt(0)\n    s_barrier\n" + \
  rep(200, lambda i: f"    v_mov_b32 v{16+i}, 0") + """
    v_lshrrev_b32 v4, 5, v1
    v_lshlrev_b32 v4, 3, v4
    v_bfe_u32 v5, v1, 2, 2
    v_add_u32 v4, v4, v5
    v_and_b32 v5, 3, v1
    v_lshlrev_b32 v5, 3, v5
    v_bfe_u32 v6, v1, 4, 1
    v_mul_u32_u24 v8, 224, v4
    v_mul_u32_u24 v7, 7296, v6
    v_add3_u32 v9, v8, v7, v5
    v_lshlrev_b32 v3, 3, v1
"""


def e2(order, nk, lds=True):
    L = []
    cnt = 0
    for kb in range(0, 4, nk):
        items = []
        if order == "A":
            for t in range(7):
                for tk in range(4):
                    for k in range(nk): items.append((t, tk, kb+k))
        elif order == "B":
            for tk in range(4):
                for t in range(7):
                    for k in range(nk): items.append((t, tk, kb+k))
        for (t, tk, k) in items:
            acc = f"v[{64+16*t+4*tk}:{67+16*t+4*tk}]"
            buf = 176 + 4*((k*7+t) % 14)
            a = 16*k + 4*tk
            if lds and cnt % 8 == 0: L.append("    s_waitcnt lgkmcnt(4)")
            L.append(f"    v_mfma_f32_16x16x32_bf16 {acc}, v[{buf}:{buf+3}], a[{a}:{a+3}], {acc}")
            if lds and cnt % 2 == 0:
                b2 = 232 + 2*((cnt//2) % 8)
                L.append(f"    ds_read_b64_tr_b16 v[{b2}:{b2+1}], v3 offset:{(cnt//2)*512}")
            cnt += 1
    return "\n".join(L)
def e1(order):
    L = []
    for ks in range(8):
        for t in range(7):
            acc = f"v[{64+16*t}:{79+16*t}]"
            buf = 176 + 4*((ks*7+t) % 14)
            L.append("    s_waitcnt lgkmcnt(12)")
            if order == "AB": L.append(f"    v_mfma_f32_32x32x16_bf16 {acc}, v[{buf}:{buf+3}], a[{4*ks}:{4*ks+3}], {acc}")
            else: L.append(f"    v_mfma_f32_32x32x16_bf16 {acc}, a[{4*ks}:{4*ks+3}], v[{buf}:{buf+3}], {acc}")
            b2 = 232 + 4*((ks*7+t) % 4)
            L.append(f"    ds_read_b64_tr_b16 v[{b2}:{b2+1}], v3 offset:{(ks*7+t)*1024}")
            L.append(f"    ds_read_b64_tr_b16 v[{b2+2}:{b2+3}], v3 offset:{(ks*7+t)*1024+512}")
    return "\n".join(L)
init2 = init + "\n" + rep(56, lambda i: f"    v_accvgpr_read_b32 v{176+i}, a{(i*3)%128}") + "\n"
for iters in (4, 40):
    for o in ("AB", "BA"):
        run(f"e1_{o}_{iters}", e1(o), init=init2, block=256, grid=256, vgpr=512, accum=256, iters=iters, lds=131072, reps=5)
    for order in ("A", "B"):
        for nk in (1, 2, 4):
            run(f"e2_{order}_nk{nk}_{iters}", e2(order, nk), init=init2, block=256, grid=256, vgpr=512, accum=256, iters=iters, lds=131072, reps=5)
```

```python
from mbl import run
def rep(n, f): return "\n".join(f(i) for i in range(n))
init = rep(230, lambda i: f"    v_mov_b32 v{i+4}, 0") + "\n" + rep(128, lambda i: f"    v_accvgpr_write_b32 a{i}, 0") + """
    v_and_b32 v1, 63, v0
    v_lshlrev_b32 v2, 4, v1
    v_lshlrev_b32 v3, 3, v1
    s_lshl_b32 s33, s2, 14
    v_lshlrev_b32 v2, 4, v0
    s_mov_b32 m0, 65536
"""
TR = lambda k: f"ds_read_b64_tr_b16 v[{200+2*k}:{201+2*k}], v3 offset:{k*512}"
LD = "buffer_load_dwordx4 a[100:103], v2, s[12:15], s33 offen"
DMA = "buffer_load_dwordx4 v2, s[12:15], s33 offen lds"
SA = "s_add_u32 s34, s33, 0x1000"
WT = "s_waitcnt lgkmcnt(8)"
def body(gaps, every=1):
    L = []
    for n in range(16):
        for i in range(4):
            acc = f"v[{64+4*((n*2+i//2)%28)}:{67+4*((n*2+i//2)%28)}]"
            L.append(f"    v_mfma_f32_16x16x32_bf16 {acc}, v[16:19], a[0:3], {acc}")
            for x in gaps[i]:
                if x in (LD, DMA, SA) and n % every: continue
                L.append("    " + x)
    L.append("    s_waitcnt vmcnt(16)")
    return "\n".join(L)
T = {
 "none": [[],[],[],[]],
 "1tr_each+wait": [[TR(0)],[TR(1)],[TR(2)],[TR(3),WT]],
 "1tr_each+LD": [[TR(0)],[TR(1),LD],[TR(2)],[TR(3),WT]],
 "1tr_each+LDbefore": [[TR(0)],[LD,TR(1)],[TR(2)],[TR(3),WT]],
 "1tr_each+DMA": [[TR(0)],[TR(1),DMA],[TR(2)],[TR(3),WT]],
 "1tr_each+SA": [[TR(0)],[TR(1),SA],[TR(2)],[TR(3),WT]],
 "1tr_each+SASA": [[TR(0)],[TR(1),SA,SA],[TR(2)],[TR(3),WT]],
 "1tr_each+SA_SA": [[TR(0),SA],[TR(1),SA],[TR(2)],[TR(3),WT]],
 "2tr_LD_1_1": [[TR(0),TR(1)],[LD],[TR(2)],[TR(3),WT]],
 "LD_2tr_1_1": [[LD],[TR(0),TR(1)],[TR(2)],[TR(3),WT]],
 "2tr2tr_LD_wait": [[TR(0),TR(1)],[TR(2),TR(3)],[LD],[WT]],
 "LD only": [[LD],[],[],[]],
 "LD LD": [[LD],[],[LD],[]],
 "LD tr LD tr": [[LD],[TR(0)],[LD],[TR(1),WT]],
 "2tr_-_2tr_-": [[TR(0),TR(1)],[],[TR(2),TR(3)],[WT]],
 "1tr_each+LD_LD": [[TR(0),LD],[TR(1)],[TR(2),LD],[TR(3),WT]],
}
import re
for nm, g in T.items():
    for ev in (1, 2):
        t = run(re.sub(r"\W","_",nm)+f"_e{ev}", body(g, ev), init=init, block=256, grid=256, vgpr=512, accum=256, iters=100, lds=131072)
        if t: print("      per entry:", t/16)
```

```python
from mbl import run
def rep(n, f): return "\n".join(f(i) for i in range(n))
init = rep(120, lambda i: f"    v_mov_b32 v{i+4}, 0") + "\n    v_mov_b32 v3, 0xdddddddd\n" + rep(120, lambda i: f"    v_accvgpr_write_b32 a{i}, 0") + """
    v_and_b32 v1, 63, v0
    v_lshlrev_b32 v1, 4, v1
    v_mov_b32 v2, v1
    s_mov_b32 s30, 0x0000ffff
    s_mov_b32 s31, 0x0000ffff
    s_lshr_b32 s34, s2, 3
    s_lshl_b32 s34, s34, 17
    s_mov_b32 s33, s34
    s_mov_b32 m0, 0
"""
S = lambda u, a=0, b=16: f"v[{16+16*(u%3)+a}:{16+16*(u%3)+b-1}]"
O = lambda u: f"v[{64+16*(u%2)}:{79+16*(u%2)}]"
Q = lambda u: f"v[{96+4*(u%2)}:{99+4*(u%2)}]"
D = 6
K = lambda j: f"a[{12*(j%D)}:{12*(j%D)+3}]"
V = lambda j, f: f"a[{12*(j%D)+4+4*f}:{12*(j%D)+7+4*f}]"
def unit(u, extra, pos=(0,4,10)):
    L = []
    j = u//2
    for i in range(16):
        if i == pos[0]: L.append(f"    v_mfma_f32_32x32x16_bf16 {S(u+1)}, {K((u+1)//2)}, {Q(u+1)}, 0")
        if i == pos[1]: L.append(f"    v_smfmac_f32_32x32x32_bf16 {O(u-1)}, {V((u-1)//2,1)}, {S(u-1,8,16)}, v3")
        if i == pos[2]: L.append(f"    v_smfmac_f32_32x32x32_bf16 {O(u)}, {V(j,0)}, {S(u,0,8)}, v3")
        for x in extra.get((u%2, i), []):
            L.append("    " + x.replace("KK", K(j-1+D)).replace("V0", V(j-1+D,0)).replace("V1", V(j-1+D,1)).replace("OFF", str(((j+D)%64)*2048)))
        L.append(f"    v_exp_f32 v{16+16*(u%3)+i}, v{16+16*(u%3)+i}")
    return "\n".join(L)
LK = "buffer_load_dwordx4 KK, v1, s[12:15], s33 offen sc1"
LV0 = "buffer_load_dwordx4 V0, v2, s[12:15], s33 offen offset:1024 sc1"
LV1 = "buffer_load_dwordx4 V1, v2, s[12:15], s33 offen offset:1536 sc1"
W = f"s_waitcnt vmcnt({3*(D-2)})"
EX0 = "s_mov_b64 exec, s[30:31]"; EX1 = "s_mov_b64 exec, -1"
ADD = "s_add_u32 s33, s34, OFF"
DK = "ds_read_b128 KK, v1 offset:0"; DV0 = "ds_read_b128 V0, v1 offset:1024"; DV1 = "ds_read_b128 V1, v1 offset:2048"
DMA = "buffer_load_dwordx4 v1, s[12:15], s33 offen lds"

SM = "s_mov_b32 m0, s33"
tests = {
 "none": {},
 "cur": {(0,4):[ADD,ADD],(0,10):[ADD,LK,EX0,LV0,LV1,EX1]},
 "split": {(0,4):[ADD,ADD],(0,10):[ADD,LK],(1,4):[EX0,LV0,LV1,EX1]},
 "split2": {(0,4):[ADD,ADD],(0,10):[ADD,LK],(1,4):[EX0,"s_nop 0",LV0,LV1,EX1]},
 "split3": {(0,4):[ADD,ADD],(0,10):[ADD,LK],(1,4):[EX0,LV0,EX1],(1,10):[EX0,LV1,EX1]},
 "noexec": {(0,4):[ADD,ADD],(0,10):[ADD,LK,LV0,LV1]},
 "noexec_split": {(0,4):[ADD,ADD],(0,10):[ADD,LK],(1,4):[LV0,LV1]},
 "noexec_split3": {(0,4):[ADD,ADD],(0,10):[ADD,LK],(1,4):[LV0],(1,10):[LV1]},
 "K_afterqk": {(0,4):[ADD,ADD],(0,10):[EX0,LV0,LV1,EX1],(1,0):[LK]},
 "dma_alone": {(0,10):[DMA]},
 "dma_2salu": {(0,10):[SM,ADD,DMA]},
 "4tr": {(0,4):["ds_read_b64_tr_b16 a[100:101], v1","ds_read_b64_tr_b16 a[102:103], v1 offset:256","ds_read_b64_tr_b16 a[104:105], v1","ds_read_b64_tr_b16 a[106:107], v1 offset:256"]},
 "2tr": {(0,4):["ds_read_b64_tr_b16 a[100:101], v1","ds_read_b64_tr_b16 a[102:103], v1 offset:256"]},
 "1tr": {(0,4):["ds_read_b64_tr_b16 a[100:101], v1"]},
 "1tr_x3": {(0,0):["ds_read_b64_tr_b16 a[100:101], v1"],(0,4):["ds_read_b64_tr_b16 a[102:103], v1"],(0,10):["ds_read_b64_tr_b16 a[104:105], v1"]},
 "3tr": {(0,4):["ds_read_b64_tr_b16 a[100:101], v1","ds_read_b64_tr_b16 a[102:103], v1 offset:256","ds_read_b64_tr_b16 a[104:105], v1"]},
 "dma+2tr": {(0,4):["ds_read_b64_tr_b16 a[100:101], v1","ds_read_b64_tr_b16 a[102:103], v1 offset:256",DMA]},
 "2dma": {(0,4):[DMA,DMA]},
}
for nm, extra in tests.items():
    body = "\n".join(unit(u, extra) for u in range(24)) + "\n    s_waitcnt vmcnt(20) lgkmcnt(0)\n    s_nop 0\n"
    t = run(f"attn_{nm}", body, init=init, block=256, grid=256, vgpr=512, accum=256, iters=50, lds=131072, unroll=1)
    if t:
        if nm == "none": base = t
        print("      extra per k-tile:", (t-base)/12)
```
